```python
import torch

def _softmax(x, axis=-1):
    return torch.softmax(x, dim=axis)

def _gelu(x):
    return torch.nn.functional.gelu(x, approximate='tanh')

def _silu(x):
    return torch.nn.functional.silu(x)

def _sigmoid(x):
    return torch.sigmoid(x)

def _layernorm(x, axis=-1, eps=1e-05):
    m = x.mean(dim=axis, keepdim=True)
    v = x.var(dim=axis, keepdim=True, unbiased=False)
    return (x - m) / torch.sqrt(v + eps)

def _scatter_add(tgt, idx, src, axis=0):
    return tgt.clone().index_add_(axis, idx, src)

def _segment_sum(src, seg, n):
    out = torch.zeros((n,) + src.shape[1:], dtype=src.dtype)
    return out.index_add_(0, seg, src)

def _pad(x, pw):
    flat = tuple((v for pair in reversed(pw) for v in pair))
    return torch.nn.functional.pad(x, flat)
kernel_name = 'adaLN_cond__ssm_conv_s4d__geglu_ffn__prompt'

def setup_inputs():

    _w = lambda a: (lambda t: t.to(torch.bfloat16) if t.is_floating_point() else t)(torch.as_tensor(a))

    def _A_setup():
        Bsz, L, D, N = (1, 2048, 512, 128)
        return {'u': _w((lambda *s: torch.randn(*s, dtype=torch.bfloat16) * 0.05)(Bsz, L, D)), 'log_A_real': _w((lambda *s: torch.randn(*s, dtype=torch.bfloat16) * 3.2)(D, N) * 0.5), 'A_imag': _w((lambda *s: torch.randn(*s, dtype=torch.bfloat16) * 0.05)(D, N) * 3.14), 'C_real': _w((lambda *s: torch.randn(*s, dtype=torch.bfloat16) * 0.4)(D, N) / N ** 0.5), 'C_imag': _w((lambda *s: torch.randn(*s, dtype=torch.bfloat16) * 0.4)(D, N) / N ** 0.5), 'log_dt': _w((lambda *s: torch.randn(*s, dtype=torch.bfloat16) * 0.05)(D) * 0.5 - 4.0), 'D_skip': _w((lambda *s: torch.randn(*s, dtype=torch.bfloat16) * 0.1)(D))}
    _A_in = _A_setup()

    def _B_setup():
        B, S, D, F = (1, 2048, 512, 1376)
        return {'x': _w((lambda *s: torch.randn(*s, dtype=torch.bfloat16) * 0.05)(B, S, D)), 'w_gate': _w((lambda *s: torch.randn(*s, dtype=torch.bfloat16) * 0.05)(D, F)), 'w_up': _w((lambda *s: torch.randn(*s, dtype=torch.bfloat16) * 0.05)(D, F)), 'w_down': _w((lambda *s: torch.randn(*s, dtype=torch.bfloat16) * 0.05)(F, D))}
    _B_in = _B_setup()
    return {'A_u': _A_in['u'], 'A_log_A_real': _A_in['log_A_real'], 'A_A_imag': _A_in['A_imag'], 'A_C_real': _A_in['C_real'], 'A_C_imag': _A_in['C_imag'], 'A_log_dt': _A_in['log_dt'], 'A_D_skip': _A_in['D_skip'], 'B_x': _B_in['x'], 'B_w_gate': _B_in['w_gate'], 'B_w_up': _B_in['w_up'], 'B_w_down': _B_in['w_down'], 'c': _w((lambda *s: torch.randn(*s, dtype=torch.bfloat16) * 0.2)(1, 512) * 8.0), 'w_mod': _w((lambda *s: torch.randn(*s, dtype=torch.bfloat16) * 0.2)(512, 6 * 512) * 512 ** (-0.5) * 8.0)}

def reference(A_u, A_log_A_real, A_A_imag, A_C_real, A_C_imag, A_log_dt, A_D_skip, B_x, B_w_gate, B_w_up, B_w_down, c, w_mod):

    def _A_ref(u, log_A_real, A_imag, C_real, C_imag, log_dt, D_skip):
        L = u.shape[1]
        dt = torch.exp(log_dt)
        A = -torch.exp(log_A_real) + 1j * A_imag
        C = (C_real + 1j * C_imag) * dt[:, None]
        pos = (lambda x, dt: x.to(dt))(torch.arange(L), log_dt.dtype)
        P = torch.exp((A * dt[:, None])[:, :, None] * pos[None, None, :])
        K = 2.0 * torch.einsum('dn,dnl->dl', C, P).real
        L2 = 2 * L
        u_t = (lambda x, *d: x.permute(*d))(u, 0, 2, 1)
        Kf = (lambda x, *a, **k: torch.fft.rfft(x.float(), *a, **k))(K, L2)
        Uf = (lambda x, *a, **k: torch.fft.rfft(x.float(), *a, **k))(u_t, L2)
        y = (lambda x, *a, **k: torch.fft.irfft(x, *a, **k).to(torch.bfloat16))(Uf * Kf[None, :, :], L2)[:, :, :L]
        y = (lambda x, *d: x.permute(*d))(y, 0, 2, 1)
        return y + u * D_skip[None, None, :]

    def _B_ref(x, w_gate, w_up, w_down):
        return _gelu(x @ w_gate) * (x @ w_up) @ w_down
    x = A_u
    mod = (_silu(c) @ w_mod).reshape(c.shape[0], 6, 1, -1)
    sa, ca, ga, sb, cb, gb = (mod[:, 0].clone(), mod[:, 1].clone(), mod[:, 2].clone(), mod[:, 3].clone(), mod[:, 4].clone(), mod[:, 5].clone())
    h = _layernorm(x, axis=-1) * (1 + ca) + sa
    x = x + ga * _A_ref(h, A_log_A_real, A_A_imag, A_C_real, A_C_imag, A_log_dt, A_D_skip)
    h = _layernorm(x, axis=-1) * (1 + cb) + sb
    x = x + gb * _B_ref(h, B_w_gate, B_w_up, B_w_down)
    return x
```

```python
import re

REG = re.compile(r'(?<![\w.])(-?\|?)([vas])(\d+|\[(\d+):(\d+)\])')

def regs_of(tok):
    out = set()
    t = tok.strip()
    for m in re.finditer(r'(?<![\w])([vas])(?:(\d+)|\[(\d+):(\d+)\])(?![\w])', t):
        f = m.group(1)
        if m.group(2) is not None:
            out.add((f, int(m.group(2))))
        else:
            for i in range(int(m.group(3)), int(m.group(4)) + 1):
                out.add((f, i))
    if re.search(r'\bvcc\b', t): out |= {('s', 106), ('s', 107)}
    if re.search(r'\bvcc_lo\b', t): out.add(('s', 106))
    if re.search(r'\bvcc_hi\b', t): out.add(('s', 107))
    if re.search(r'\bexec\b', t): out |= {('s', 126), ('s', 127)}
    if re.search(r'\bm0\b', t): out.add(('s', 124))
    return out

def split_ops(s):
    ops, depth, cur = [], 0, ''
    for ch in s:
        if ch in '[(': depth += 1
        if ch in '])': depth -= 1
        if ch == ',' and depth == 0:
            ops.append(cur.strip()); cur = ''
        else:
            cur += ch
    if cur.strip(): ops.append(cur.strip())
    return ops

TRANS = ('v_exp_f32', 'v_log_f32', 'v_rcp_f32', 'v_rsq_f32', 'v_sqrt_f32', 'v_sin_f32', 'v_cos_f32', 'v_rcp_iflag_f32')

class Ins:
    def __init__(self, text):
        self.text = text
        t = text.split(';')[0].strip()
        self.is_label = t.endswith(':')
        self.is_dir = t.startswith('.')
        self.mn = ''
        self.w = set(); self.r = set()
        self.kind = 'other'
        if not t or self.is_label or self.is_dir:
            self.kind = 'label' if self.is_label else 'none'
            return
        parts = t.split(None, 1)
        mn = self.mn = parts[0]
        rest = parts[1] if len(parts) > 1 else ''
        ops = split_ops(rest)
        self.mods = ''
        clean = []
        for o in ops:
            p = o.split(None, 1)
            if len(p) > 1 and not o.startswith('hwreg') and not re.match(r'^(vmcnt|lgkmcnt|expcnt)', o):
                clean.append(p[0]); self.mods += ' ' + p[1]
            else:
                clean.append(o)
        self.ops = ops = clean
        R = lambda idx: set().union(*[regs_of(ops[i]) for i in idx if i < len(ops)]) if idx else set()
        allidx = list(range(len(ops)))
        if mn.startswith('v_mfma'):
            self.kind = 'mfma'
            self.w = R([0]); self.a = R([1]); self.b = R([2]); self.c = R([3]); self.r = self.a | self.b | self.c
            self.passes = 8 if '32x32x16' in mn else 4 if '16x16x32' in mn else 16
        elif mn.startswith('v_cmp'):
            self.kind = 'valu'; self.w = R([0]); self.r = R(allidx[1:])
        elif mn in ('v_readlane_b32', 'v_readfirstlane_b32'):
            self.kind = 'valu'; self.w = R([0]); self.r = R(allidx[1:])
        elif mn.startswith('v_permlane') and 'swap' in mn:
            self.kind = 'valu'; self.w = R([0, 1]); self.r = R([0, 1])
        elif mn.startswith('v_add_co') or mn.startswith('v_sub_co') or mn.startswith('v_addc_co') or mn.startswith('v_subb_co'):
            self.kind = 'valu'; self.w = R([0, 1]); self.r = R(allidx[2:])
        elif mn.startswith('v_'):
            self.kind = 'valu'; self.w = R([0]); self.r = R(allidx[1:])
            if mn.startswith(('v_fmac', 'v_dot2c', 'v_writelane', 'v_pk_fmac')) or '_dpp' in mn or 'dpp' in self.mods or 'row_' in self.mods or 'quad_perm' in self.mods:
                self.r |= R([0])
            if mn.startswith('v_cndmask') and len(ops) == 3: self.r |= {('s', 106), ('s', 107)}
            if 'UNUSED_PRESERVE' in self.mods: self.r |= R([0])
        elif mn.startswith('ds_'):
            self.kind = 'ds'
            if mn.startswith(('ds_read', 'ds_bpermute', 'ds_permute', 'ds_swizzle')):
                self.w = R([0]); self.r = R(allidx[1:])
                if 'd16' in mn: self.r |= R([0])
            else:
                self.r = R(allidx)
        elif mn.startswith(('buffer_', 'global_')):
            self.kind = 'vmem'
            self.lds = ' lds' in (' ' + self.mods + ' ') or '_lds_' in mn
            if mn.startswith(('buffer_wbl2', 'buffer_inv')):
                pass
            elif self.lds:
                self.r = R(allidx) | {('s', 124)}
            elif mn.startswith('buffer_load') or mn.startswith('global_load'):
                self.w = R([0]); self.r = R(allidx[1:])
                if 'd16' in mn: self.r |= R([0])
            elif 'atomic' in mn:
                self.r = R(allidx)
                if 'sc0' in self.mods:
                    self.w = R([0]) if mn.startswith('buffer') else R([0])
            else:
                self.r = R(allidx)
                self.store_data = R([0]) if mn.startswith('buffer') else R([1])
                self.wide = 'x4' in mn or 'x3' in mn
        elif mn.startswith('s_load') or mn.startswith('s_buffer_load') or mn in ('s_memtime', 's_memrealtime'):
            self.kind = 'smem'; self.w = R([0]); self.r = R(allidx[1:])
        elif mn.startswith('s_'):
            self.kind = 'salu'
            if mn.startswith(('s_cmp', 's_cbranch', 's_branch', 's_waitcnt', 's_barrier', 's_nop', 's_endpgm', 's_sleep', 's_setprio', 's_bitcmp')):
                self.r = R(allidx)
            else:
                self.w = R([0]); self.r = R(allidx[1:])
                if 'saveexec' in mn:
                    self.w |= {('s', 126), ('s', 127)}; self.r |= {('s', 126), ('s', 127)}
                if mn.startswith(('s_addk', 's_mulk', 's_cmov')): self.r |= R([0])
        self.is_trans = any(mn.startswith(x) for x in TRANS)
        self.is_dpp = '_dpp' in mn or 'row_' in self.mods or 'quad_perm' in self.mods or 'wave_' in self.mods
        self.is_perm = mn.startswith('v_permlane')
        self.is_rdlane = mn in ('v_readlane_b32', 'v_readfirstlane_b32')

    def states(self):
        if self.kind in ('label', 'none'): return 0
        if self.mn == 's_nop': return int(self.ops[0], 0) + 1
        return 1

def vec(s): return {x for x in s if x[0] in 'va'}
def sc(s): return {x for x in s if x[0] == 's'}

def need(p, c):
    n = 0
    if p.kind == 'valu':
        pv, ps = vec(p.w), sc(p.w)
        if c.kind == 'mfma' and pv & c.r: n = max(n, 2)
        if c.kind == 'valu':
            if c.is_dpp and pv & c.r: n = max(n, 2)
            if c.is_perm and pv & c.r: n = max(n, 2)
            if c.is_rdlane and pv & vec(c.r): n = max(n, 1)
            if p.is_trans and not c.is_trans and pv & c.r: n = max(n, 1)
            if ps & c.r:
                n = max(n, 4 if (c.mn in ('v_readlane_b32', 'v_writelane_b32')) else 2)
            if ('sdwa' in p.mn or 'op_sel' in p.mods) and not p.mn.startswith('v_pk_') and pv & (c.r | c.w): n = max(n, 1)
        if c.kind in ('vmem',) and ps & c.r: n = max(n, 5)
        if c.kind in ('vmem', 'ds') and p.is_trans and pv & c.r: n = max(n, 1)
        if ('s', 126) in p.w and c.kind in ('valu', 'mfma'): n = max(n, 5)
    if p.kind == 'salu' and ('s', 124) in p.w and c.kind in ('vmem', 'ds') and ('s', 124) in c.r: n = max(n, 1)
    if p.kind == 'mfma':
        d = p.w
        big = {4: 8, 8: 12, 16: 20}[p.passes]
        if c.kind == 'mfma':
            if d & c.c:
                if c.c == d and c.passes == p.passes: pass
                else: n = max(n, {4: 6, 8: 10, 16: 18}[p.passes])
            if d & (c.a | c.b): n = max(n, big)
            if d & c.w and not (c.c == d and c.w == d): n = max(n, big)
        elif c.kind in ('valu', 'vmem', 'ds'):
            if d & (c.r | c.w): n = max(n, big)
        if c.kind == 'valu' and p.c & c.w: n = max(n, {4: 3, 8: 7, 16: 15}[p.passes])
    if p.kind == 'vmem' and getattr(p, 'wide', False):
        if c.kind in ('valu', 'mfma') and p.store_data & c.w: n = max(n, 2)
        elif c.kind in ('vmem', 'ds') and p.store_data & c.w: n = max(n, 1)
    return n

class Asm:
    def __init__(self):
        self.lines = []
    def __call__(self, *xs):
        for x in xs:
            for l in x.split('\n'):
                if l.strip(): self.lines.append(l.strip())
    def label(self, n): self.lines.append(n + ':')
    def comment(self, s): self.lines.append('; ' + s)

    def finish(self, check_waits=True, name=''):
        ins = [Ins(l) for l in self.lines]
        out = []
        for c in ins:
            if c.kind in ('label', 'none'):
                out.append(c); continue
            worst = 0; dist = 0
            for p in reversed(out):
                if p.kind == 'none': continue
                if p.kind == 'label': continue
                req = need(p, c)
                if req - dist > worst: worst = req - dist
                dist += p.states()
                if dist >= 20: break
            while worst > 0:
                k = min(worst, 16)
                out.append(Ins(f's_nop {k-1}')); worst -= k
            out.append(c)
        if check_waits: self.check(out, name)
        return [o.text for o in out]

    def check(self, ins, name):
        vm, lg = [], []
        for idx, c in enumerate(ins):
            if c.kind in ('label', 'none'): continue
            if c.mn == 's_waitcnt':
                t = c.text
                m = re.search(r'vmcnt\((\d+)\)', t)
                if m:
                    k = int(m.group(1)); assert k < 63, 'vmcnt(63) is the no-wait encoding'; vm = vm[len(vm) - k:] if k < len(vm) and k > 0 else ([] if k == 0 else vm)
                m = re.search(r'lgkmcnt\((\d+)\)', t)
                if m:
                    k = int(m.group(1))
                    assert k < 15, 'lgkmcnt(15) is the no-wait encoding'
                    if k == 0: lg = []
                    elif any(x[1] == 'smem' for x in lg): pass
                    elif k < len(lg): lg = lg[len(lg) - k:]
                continue
            touched = c.r | c.w
            for q in (vm, lg):
                for dst, kind, j in q:
                    if dst & touched and not (c.kind == kind and 'd16' in c.mn and dst & c.w and not (dst & (c.r - c.w))):
                        print(f'[waitcheck {name}] "{c.text}" touches {sorted(dst & touched)[:3]} of outstanding "{ins[j].text}"')
            if c.kind == 'vmem' and not c.mn.startswith(('buffer_wbl2', 'buffer_inv')): vm.append((set(c.w), 'vmem', idx))
            elif c.kind == 'ds': lg.append((set(c.w), 'ds', idx))
            elif c.kind == 'smem': lg.append((set(c.w), 'smem', idx))
            if c.mn in ('s_endpgm', 's_branch'): vm, lg = [], []

def kernel_text(name, lines, vgpr, agpr=0, sgpr=96):
    acc = ((vgpr + 3) // 4) * 4
    nfv = acc + agpr if agpr else vgpr
    code = [".text", f".globl {name}", ".p2align 8", f".type {name},@function", f"{name}:"]
    for x in lines:
        code.append(x if (x.endswith(":") or x.startswith(';')) else "    " + x)
    desc = [".section .rodata,\"a\"", ".p2align 6", f".amdhsa_kernel {name}",
            f"  .amdhsa_next_free_vgpr {nfv}", f"  .amdhsa_next_free_sgpr {sgpr}", f"  .amdhsa_accum_offset {acc}",
            "  .amdhsa_group_segment_fixed_size 0", "  .amdhsa_kernarg_size 128", "  .amdhsa_user_sgpr_count 2",
            "  .amdhsa_user_sgpr_kernarg_segment_ptr 1", "  .amdhsa_system_sgpr_workgroup_id_x 1",
            "  .amdhsa_float_denorm_mode_32 3",
            ".end_amdhsa_kernel"]
    return "\n".join(code) + "\n", "\n".join(desc) + "\n"
```

```python
from asm import *

KA = dict(u=0, lar=8, aim=16, cre=24, cim=32, ldt=40, dsk=48, bx=56, wg=64, wu=72, wd=80, c=88, wmod=96, out=104, dbg=112, ws=120)

WS_MOD  = 0x000000
WS_NEGM = 0x004000
WS_RINV = 0x006000
WS_UB   = 0x010000
WS_RT   = 0x210000
RT_STRIDE = 4160
WS_X1T  = 0x420000
WS_WP   = 0x620000
WP_SLICE = 16 * 12288
WS_WPX  = 0x8F0000
WS_WDP  = 0x920000
WDP_TILE = 86 * 1024
WS_ACT  = 0xA80000
ACT_TILE = 86 * 1024
WS_END  = 0xFE0000
WS_BYTES = 0x10000000

LOG2E = 1.4426950408889634

def f2u(x):
    import struct
    return struct.unpack('<I', struct.pack('<f', x))[0]
def fhex(x): return hex(f2u(x))

def srd(a, base, pair, nbytes):
    a(f's_mov_b32 s{base}, s{pair}', f's_and_b32 s{base+1}, s{pair+1}, 0xffff',
      f's_mov_b32 s{base+2}, {hex(nbytes)}', f's_mov_b32 s{base+3}, 0x00020000')

def srd_off(a, base, pair, off, nbytes):
    a(f's_add_u32 s{base}, s{pair}, {hex(off)}', f's_addc_u32 s{base+1}, s{pair+1}, 0',
      f's_and_b32 s{base+1}, s{base+1}, 0xffff',
      f's_mov_b32 s{base+2}, {hex(nbytes)}', f's_mov_b32 s{base+3}, 0x00020000')

def round_bf16_pair(a, dst_lo, dst_hi, src_lo, src_hi, tmp):
    a(f'v_cvt_pk_bf16_f32 v{tmp}, v{src_lo}, v{src_hi}',
      f'v_lshlrev_b32 v{dst_lo}, 16, v{tmp}',
      f'v_and_b32 v{dst_hi}, 0xffff0000, v{tmp}')


import os
STAMPS = int(os.environ.get('STAMPS', '0'))
WS_DBG = 0x4000000
class Stamps:
    def __init__(self, a, kid):
        self.a, self.kid, self.n = a, kid, 0
    def begin(self):
        if not STAMPS: return
        a = self.a
        a(f's_load_dwordx2 s[96:97], s[0:1], {KA["ws"]}', 's_memrealtime s[92:93]', 's_memtime s[76:77]', 's_waitcnt lgkmcnt(0)')
        srd_off(a, 96, 96, WS_DBG + self.kid * 0x100000, 0x100000)
        for k in range(1, 8): a(f's_mov_b32 s{76+2*k}, 0')
    def stamp(self, k):
        if not STAMPS: return
        self.a(f's_memtime s[{76+2*k}:{77+2*k}]', 's_waitcnt lgkmcnt(0)')
    def end(self, role):
        if not STAMPS: return
        a = self.a
        a('s_mov_b64 exec, -1', 's_memrealtime s[94:95]', 's_waitcnt lgkmcnt(0)')
        a('v_lshrrev_b32 v1, 6, v0', 'v_readfirstlane_b32 s100, v1', 's_lshl_b32 s101, s2, 3', 's_add_u32 s100, s100, s101', 's_lshl_b32 s100, s100, 6')
        for k in range(8): a(f'v_mov_b32 v{4+k}, s{76+2*k}')
        a('v_mov_b32 v12, s92', 'v_mov_b32 v13, s94', f'v_mov_b32 v14, {role}', 'v_mov_b32 v15, s2', 'v_mov_b32 v2, 0', 's_mov_b64 exec, 1')
        for q in range(3): a(f'buffer_store_dwordx4 v[{4+4*q}:{7+4*q}], v2, s[96:99], s100 offen offset:{16*q}')
```

```python
from common import *

N_KGEN, N_STAT, N_GEMV = 512, 64, 96
K1_GRID = N_KGEN + N_STAT + N_GEMV
K1_LDS = 26 * 1024

def gemv_role(a, idreg):
    a.comment('---- role: modulation GEMV')
    a(f's_load_dwordx2 s[4:5], s[0:1], {KA["c"]}', f's_load_dwordx2 s[6:7], s[0:1], {KA["wmod"]}', f's_load_dwordx2 s[8:9], s[0:1], {KA["ws"]}')
    a('v_and_b32 v1, 3, v0', 'v_lshrrev_b32 v2, 2, v0',
      'v_mul_u32_u24 v3, 6144, v2', 'v_lshl_add_u32 v3, v1, 4, v3',
      'v_lshlrev_b32 v4, 1, v2')
    a(f's_lshl_b32 s24, s{idreg}, 6')
    a('s_waitcnt lgkmcnt(0)')
    srd(a, 12, 4, 1024); srd(a, 16, 6, 512 * 6144); srd_off(a, 20, 8, WS_MOD, 3072 * 4)
    for i in range(8):
        a(f'v_mov_b32 v{8+i}, 0')
    for i in range(8):
        a(f'buffer_load_short_d16_hi v{8+i}, v4, s[12:15], 0 offen offset:{i*128}')
    for i in range(8):
        a(f'buffer_load_dwordx4 v[{16+4*i}:{19+4*i}], v3, s[16:19], s24 offen')
        if i < 7: a(f's_add_u32 s24, s24, {64*6144}')
    for i in range(8): a(f'v_mov_b32 v{64+i}, 0')
    ST.stamp(1)
    a('s_waitcnt vmcnt(8)')
    ST.stamp(2)
    for i in range(8): a(f'v_mul_f32 v{48+i}, {fhex(-LOG2E)}, v{8+i}')
    for i in range(8): a(f'v_exp_f32 v{48+i}, v{48+i}')
    for i in range(8): a(f'v_add_f32 v{48+i}, 1.0, v{48+i}')
    for i in range(8): a(f'v_rcp_f32 v{48+i}, v{48+i}')
    for i in range(8): a(f'v_mul_f32 v{48+i}, v{8+i}, v{48+i}')
    for i in range(0, 8, 2): round_bf16_pair(a, 8+i, 9+i, 48+i, 49+i, 56)
    for i in range(8):
        a(f's_waitcnt vmcnt({7-i})')
        for k in range(4):
            a(f'v_lshlrev_b32 v{48+2*k}, 16, v{16+4*i+k}', f'v_and_b32 v{49+2*k}, 0xffff0000, v{16+4*i+k}')
        s = 8 + (i & ~1)
        sel = 'op_sel:[0,0,0] op_sel_hi:[1,0,1]' if i % 2 == 0 else 'op_sel:[0,1,0] op_sel_hi:[1,1,1]'
        for k in range(4):
            a(f'v_pk_fma_f32 v[{64+2*k}:{65+2*k}], v[{48+2*k}:{49+2*k}], v[{s}:{s+1}], v[{64+2*k}:{65+2*k}] {sel}')
    ST.stamp(3)
    for ror in (8, 4):
        for k in range(8):
            a(f'v_add_f32_dpp v{64+k}, v{64+k}, v{64+k} row_ror:{ror} row_mask:0xf bank_mask:0xf')
    a('v_lshrrev_b32 v5, 4, v0', 'v_lshlrev_b32 v5, 7, v5', 'v_lshl_add_u32 v5, v1, 5, v5',
      'v_and_b32 v6, 15, v0', 'v_cmp_gt_u32 vcc, 4, v6', 's_and_saveexec_b64 s[26:27], vcc',
      'ds_write_b128 v5, v[64:67]', 'ds_write_b128 v5, v[68:71] offset:16',
      's_mov_b64 exec, s[26:27]', 's_waitcnt lgkmcnt(0)', 's_barrier')
    a('v_cmp_gt_u32 vcc, 32, v0', 's_and_saveexec_b64 s[26:27], vcc', 's_cbranch_execz L_k1_end',
      'v_lshlrev_b32 v5, 2, v0')
    for p in range(16): a(f'ds_read_b32 v{16+p}, v5 offset:{p*128}')
    a('s_waitcnt lgkmcnt(0)')
    for st in (8, 4, 2, 1):
        for p in range(st): a(f'v_add_f32 v{16+p}, v{16+p}, v{16+p+st}')
    a('v_cvt_pk_bf16_f32 v16, v16, v16', 'v_and_b32 v16, 0xffff0000, v16',
      f's_lshl_b32 s24, s{idreg}, 7', 'buffer_store_dword v16, v5, s[20:23], s24 offen', 's_branch L_k1_end')

def reduce8(a, S, U):
    for j in range(4): a(f'v_permlane32_swap_b32 v{S+j}, v{S+4+j}')
    for j in range(4): a(f'v_add_f32 v{S+j}, v{S+j}, v{S+4+j}')
    a(f'v_permlane16_swap_b32 v{S}, v{S+1}', f'v_permlane16_swap_b32 v{S+2}, v{S+3}')
    a(f'v_add_f32 v{U}, v{S}, v{S+1}', f'v_add_f32 v{U+1}, v{S+2}, v{S+3}')
    for ror in (8, 4, 2, 1):
        for k in range(2):
            a(f'v_add_f32_dpp v{U+k}, v{U+k}, v{U+k} row_ror:{ror} row_mask:0xf bank_mask:0xf')

def stat_role(a, idreg):
    a.comment('---- role: LayerNorm-1 statistics and blocked transpose of u')
    a(f's_load_dwordx2 s[4:5], s[0:1], {KA["u"]}', f's_load_dwordx2 s[8:9], s[0:1], {KA["ws"]}')
    a('v_lshrrev_b32 v1, 6, v0', 'v_and_b32 v2, 63, v0')
    a('v_readfirstlane_b32 s25, v1')
    a('v_lshlrev_b32 v3, 2, v2', 'v_lshlrev_b32 v4, 5, v2')
    a(f's_lshl_b32 s24, s{idreg}, 2', 's_add_u32 s24, s24, s25')
    a('s_lshl_b32 s26, s24, 13', 's_add_u32 s27, s26, 4096')
    a('s_waitcnt lgkmcnt(0)')
    srd(a, 12, 4, 2048 * 1024); srd_off(a, 16, 8, WS_UB, 2048 * 1024); srd_off(a, 20, 8, WS_NEGM, 0x4000)
    X = 16
    for j in range(8):
        for q in range(4):
            so = 's26' if j < 4 else 's27'
            a(f'buffer_load_dword v{X+4*j+q}, v3, s[12:15], {so} offen offset:{(j%4)*1024+q*256}')
    a('s_mov_b32 s28, 0x05040100', 's_mov_b32 s29, 0x07060302')
    ST.stamp(1)
    F = 48
    S = 112
    for j in range(8):
        a(f's_waitcnt vmcnt({28-4*j})')
        for q in range(4):
            a(f'v_lshlrev_b32 v{F+8*j+2*q}, 16, v{X+4*j+q}', f'v_and_b32 v{F+8*j+2*q+1}, 0xffff0000, v{X+4*j+q}')
        b = F + 8 * j
        a(f'v_pk_add_f32 v[120:121], v[{b}:{b+1}], v[{b+2}:{b+3}]', f'v_pk_add_f32 v[122:123], v[{b+4}:{b+5}], v[{b+6}:{b+7}]',
          'v_pk_add_f32 v[120:121], v[120:121], v[122:123]', f'v_add_f32 v{S+j}, v120, v121')
    ST.stamp(2)
    T = 120
    for q in range(4):
        for e in range(2):
            t = T if e == 0 else T + 4
            for k in range(4):
                a(f'v_perm_b32 v{t+k}, v{X+4*(2*k+1)+q}, v{X+4*(2*k)+q}, s{28+e}')
            so = 's26' if q < 2 else 's27'
            a(f'buffer_store_dwordx4 v[{t}:{t+3}], v4, s[16:19], {so} offen offset:{(q%2)*2048+e*16}')
    U = 8
    reduce8(a, S, U)
    a(f'v_mul_f32 v{U}, {fhex(1/512)}, v{U}', f'v_mul_f32 v{U+1}, {fhex(1/512)}, v{U+1}')
    tok = {0: (U, 0), 1: (U, 16), 4: (U, 32), 5: (U, 48), 2: (U+1, 0), 3: (U+1, 16), 6: (U+1, 32), 7: (U+1, 48)}
    for j in range(8): a(f'v_readlane_b32 s{32+2*j}, v{tok[j][0]}, {tok[j][1]}')
    for j in range(8):
        b = F + 8 * j
        for q in range(4):
            a(f'v_pk_add_f32 v[{b+2*q}:{b+2*q+1}], v[{b+2*q}:{b+2*q+1}], s[{32+2*j}:{33+2*j}] op_sel_hi:[1,0] neg_lo:[0,1] neg_hi:[0,1]')
        a(f'v_pk_mul_f32 v[120:121], v[{b}:{b+1}], v[{b}:{b+1}]')
        for q in range(1, 4):
            a(f'v_pk_fma_f32 v[120:121], v[{b+2*q}:{b+2*q+1}], v[{b+2*q}:{b+2*q+1}], v[120:121]')
        a(f'v_add_f32 v{S+j}, v120, v121')
    ST.stamp(3)
    V = 10
    reduce8(a, S, V)
    a(f'v_mul_f32 v{V}, {fhex(1/512)}, v{V}', f'v_mul_f32 v{V+1}, {fhex(1/512)}, v{V+1}')
    round_bf16_pair(a, V, V+1, V, V+1, 12)
    a(f'v_add_f32 v{V}, {fhex(1e-5)}, v{V}', f'v_add_f32 v{V+1}, {fhex(1e-5)}, v{V+1}')
    round_bf16_pair(a, V, V+1, V, V+1, 12)
    a(f'v_sqrt_f32 v{V}, v{V}', f'v_sqrt_f32 v{V+1}, v{V+1}')
    round_bf16_pair(a, V, V+1, V, V+1, 12)
    a(f'v_rcp_f32 v{V}, v{V}', f'v_rcp_f32 v{V+1}, v{V+1}')
    round_bf16_pair(a, U, U+1, U, U+1, 12)
    a(f'v_xor_b32 v{U}, 0x80000000, v{U}', f'v_xor_b32 v{U+1}, 0x80000000, v{U+1}')
    a('v_lshrrev_b32 v5, 4, v2', 'v_and_b32 v6, 1, v5', 'v_lshrrev_b32 v5, 1, v5', 'v_lshl_add_u32 v5, v5, 2, v6', 'v_lshlrev_b32 v5, 2, v5',
      's_lshl_b32 s24, s24, 5', 's_add_u32 s30, s24, 0x2000',
      'v_and_b32 v6, 15, v2', 'v_cmp_eq_u32 vcc, 0, v6', 's_and_saveexec_b64 s[26:27], vcc')
    a(f'buffer_store_dword v{U}, v5, s[20:23], s24 offen', f'buffer_store_dword v{U+1}, v5, s[20:23], s24 offen offset:8',
      f'buffer_store_dword v{V}, v5, s[20:23], s30 offen', f'buffer_store_dword v{V+1}, v5, s[20:23], s30 offen offset:8')
    a('s_branch L_k1_end')

def cexp(a, dst, z, t, tmp):
    a(f'v_pk_mul_f32 v[{tmp}:{tmp+1}], v[{z}:{z+1}], v[{t}:{t+1}] op_sel_hi:[1,0]',
      f'v_exp_f32 v{tmp}, v{tmp}', f'v_fract_f32 v{tmp+1}, v{tmp+1}',
      f'v_cos_f32 v{dst}, v{tmp+1}', f'v_sin_f32 v{dst+1}, v{tmp+1}',
      f'v_pk_mul_f32 v[{dst}:{dst+1}], v[{dst}:{dst+1}], v[{tmp}:{tmp+1}] op_sel_hi:[1,0]')

LDS_PAR, LDS_PART, LDS_KD, LDS_SP = 0, 4096, 4096 + 16384, 4096 + 16384 + 4352

def kgen_role(a, idreg):
    a.comment('---- role: S4D kernel generation for one channel')
    d = idreg
    a(f's_load_dwordx2 s[4:5], s[0:1], {KA["lar"]}', f's_load_dwordx2 s[6:7], s[0:1], {KA["aim"]}',
      f's_load_dwordx2 s[8:9], s[0:1], {KA["cre"]}', f's_load_dwordx2 s[10:11], s[0:1], {KA["cim"]}',
      f's_load_dwordx2 s[12:13], s[0:1], {KA["ldt"]}', f's_load_dwordx2 s[14:15], s[0:1], {KA["ws"]}')
    a('v_and_b32 v1, 63, v0', 'v_lshrrev_b32 v2, 6, v0',
      'v_and_b32 v3, 31, v0', 'v_lshl_add_u32 v3, v2, 5, v3',
      f's_lshl_b32 s32, s{d}, 8', 'v_lshlrev_b32 v4, 1, v3', 'v_add_u32 v4, s32, v4')
    for r in range(8, 12): a(f'v_mov_b32 v{r}, 0')
    a(f's_lshr_b32 s33, s{d}, 1', 's_lshl_b32 s33, s33, 2')
    a('s_waitcnt lgkmcnt(0)')
    srd(a, 16, 4, 131072); srd(a, 20, 6, 131072); srd(a, 24, 8, 131072); srd(a, 28, 10, 131072)
    a('s_load_dword s34, s[12:13], s33')
    a('buffer_load_short_d16_hi v8, v4, s[16:19], 0 offen', 'buffer_load_short_d16_hi v9, v4, s[20:23], 0 offen',
      'buffer_load_short_d16_hi v10, v4, s[24:27], 0 offen', 'buffer_load_short_d16_hi v11, v4, s[28:31], 0 offen')
    srd_off(a, 36, 14, WS_RT, 512 * RT_STRIDE)
    a('v_and_b32 v5, 15, v1',
      'v_subrev_u32 v6, 8, v5', 'v_lshlrev_b32 v6, 1, v6', 'v_add_u32 v6, 256, v6',
      'v_cmp_gt_u32 vcc, 8, v5', 'v_cndmask_b32 v6, v6, v5, vcc',
      'v_subrev_u32 v7, 12, v5', 'v_and_b32 v12, 1, v7', 'v_lshlrev_b32 v12, 2, v12', 'v_lshrrev_b32 v7, 1, v7', 'v_lshl_add_u32 v7, v7, 8, v12', 'v_add_u32 v7, 512, v7',
      'v_cmp_gt_u32 vcc, 12, v5', 'v_cndmask_b32 v6, v7, v6, vcc',
      'v_cvt_f32_u32 v12, v6', 'v_lshlrev_b32 v14, 3, v5', 'v_cvt_f32_u32 v14, v14')
    a('v_mov_b32 v16, 0x43000000', 'v_mov_b32 v17, 0x44800000', 'v_cmp_gt_u32 vcc, 32, v1', 'v_cndmask_b32 v16, v17, v16, vcc')
    a('v_lshlrev_b32 v7, 3, v0', 'v_sub_u32 v7, 2047, v7')
    for i in range(8): a(f'v_subrev_u32 v{48+i}, {i}, v7')
    for i in range(8): a(f'v_cvt_f32_u32 v{48+i}, v{48+i}')
    for i in range(0, 8, 2): round_bf16_pair(a, 48+i, 49+i, 48+i, 49+i, 18)
    for i in range(8): a(f'v_cvt_u32_f32 v{48+i}, v{48+i}')
    for i in range(8): a(f'v_lshlrev_b32 v{48+i}, 1, v{48+i}')
    a('v_lshrrev_b32 v7, 4, v1',
      'v_and_b32 v18, 1, v2', 'v_lshl_add_u32 v18, v18, 4, v5', 'v_lshlrev_b32 v18, 3, v18',
      'v_lshrrev_b32 v19, 1, v2', 'v_lshl_add_u32 v18, v19, 10, v18')
    for r in range(4):
        a(f'v_lshl_add_u32 v{56+r}, v7, 2, {r}')
        a(f'v_mov_b32 v19, {256+2*r}', 'v_cmp_eq_u32 vcc, 2, v7', f'v_cndmask_b32 v{56+r}, v{56+r}, v19, vcc')
        a(f'v_mov_b32 v19, {512+4*(r&1)+256*(r>>1)}', 'v_cmp_eq_u32 vcc, 3, v7', f'v_cndmask_b32 v{56+r}, v{56+r}, v19, vcc')
        a(f'v_add_lshl_u32 v{56+r}, v{56+r}, v18, 1')
    ST.stamp(1)
    a('s_waitcnt lgkmcnt(0)')
    a(f's_and_b32 s35, s{d}, 1', 's_cmp_eq_u32 s35, 0', 's_cbranch_scc0 L_k1_odd', 's_lshl_b32 s34, s34, 16', 'L_k1_odd:', 's_and_b32 s34, s34, 0xffff0000')
    a(f'v_mov_b32 v18, {fhex(LOG2E)}', 'v_mul_f32 v18, s34, v18', 'v_exp_f32 v18, v18', 'v_cvt_pk_bf16_f32 v18, v18, v18', 'v_and_b32 v18, 0xffff0000, v18')
    a('s_waitcnt vmcnt(0)')
    ST.stamp(2)
    a(f'v_mul_f32 v8, {fhex(LOG2E)}, v8', 'v_exp_f32 v8, v8', 'v_cvt_pk_bf16_f32 v8, v8, v8', 'v_and_b32 v8, 0xffff0000, v8',
      'v_mul_f32 v8, v8, v18', f'v_mul_f32 v8, {fhex(-LOG2E)}, v8',
      'v_mul_f32 v9, v9, v18', f'v_mul_f32 v9, {fhex(0.15915494309189535)}, v9')
    cexp(a, 20, 8, 16, 22)
    a('v_lshlrev_b32 v19, 5, v3', f'ds_write_b128 v19, v[8:11] offset:{LDS_PAR}',
      'v_lshrrev_b32 v24, 5, v1', 'v_lshl_add_u32 v19, v24, 3, v19', f'ds_write_b64 v19, v[20:21] offset:{LDS_PAR+16}')
    a('v_mul_f32 v22, v20, v20', 'v_fma_f32 v22, -v21, v21, v22', 'v_mul_f32 v23, v20, v21', 'v_add_f32 v23, v23, v23',
      'v_mul_f32 v22, v10, v22', 'v_fma_f32 v22, -v11, v23, v22')
    for ror in (8, 4, 2, 1):
        a(f'v_add_f32_dpp v22, v22, v22 row_ror:{ror} row_mask:0xf bank_mask:0xf')
    a('v_lshrrev_b32 v23, 4, v0', 'v_lshlrev_b32 v23, 2, v23', f'ds_write_b32 v23, v22 offset:{LDS_SP}')
    ACC = 64
    for r in range(16): a(f'v_mov_b32 v{ACC+r}, 0')
    a('v_lshrrev_b32 v7, 4, v1', 'v_lshl_add_u32 v7, v2, 3, v7', 'v_lshlrev_b32 v7, 7, v7')
    a('s_waitcnt lgkmcnt(0)')
    P = 24
    P = 80
    ST.stamp(3)
    A0, A1, B0, B1 = 112, 116, 120, 124
    for s in range(2):
        for i in range(4):
            a(f'ds_read_b128 v[{P+8*i}:{P+8*i+3}], v7 offset:{LDS_PAR + s*512 + i*32}',
              f'ds_read_b128 v[{P+8*i+4}:{P+8*i+7}], v7 offset:{LDS_PAR + s*512 + i*32 + 16}')
        for i in range(4):
            a(f's_waitcnt lgkmcnt({6-2*i})')
            p, q = P + 8 * i, P + 8 * i + 4
            cexp(a, 20, p, 14, 22)
            a(f'v_cvt_pk_bf16_f32 v{B0+i}, v20, v21')
            a(f'v_pk_mul_f32 v[22:23], v[20:21], v[{q}:{q+1}] op_sel_hi:[1,0]',
              f'v_pk_fma_f32 v[22:23], v[20:21], v[{q}:{q+1}], v[22:23] op_sel:[1,1,0] op_sel_hi:[0,1,1] neg_lo:[1,0,0]',
              f'v_cvt_pk_bf16_f32 v{B1+i}, v22, v23')
            cexp(a, 24, p, 12, 26)
            a(f'v_pk_mul_f32 v[26:27], v[24:25], v[{p+2}:{p+3}] op_sel_hi:[1,0] neg_hi:[1,0]',
              f'v_pk_fma_f32 v[26:27], v[24:25], v[{p+2}:{p+3}], v[26:27] op_sel:[1,1,0] op_sel_hi:[0,1,1] neg_lo:[1,0,0] neg_hi:[1,0,0]',
              f'v_cvt_pk_bf16_f32 v{A0+i}, v26, v27')
            a(f'v_pk_mul_f32 v[24:25], v[26:27], v[{q+2}:{q+3}] op_sel_hi:[1,0]',
              f'v_pk_fma_f32 v[24:25], v[26:27], v[{q+2}:{q+3}], v[24:25] op_sel:[1,1,0] op_sel_hi:[0,1,1] neg_hi:[1,0,0]',
              f'v_cvt_pk_bf16_f32 v{A1+i}, v24, v25')
        for ta, A in enumerate((A0, A1)):
            for tb_, B in enumerate((B0, B1)):
                c = ACC + 4 * (2 * ta + tb_)
                a(f'v_mfma_f32_16x16x32_bf16 v[{c}:{c+3}], v[{A}:{A+3}], v[{B}:{B+3}], v[{c}:{c+3}]')
    ST.stamp(4)
    a('v_lshlrev_b32 v7, 4, v1', 'v_lshl_add_u32 v19, v2, 12, v7')
    for t in range(4):
        a(f'ds_write_b128 v19, v[{ACC+4*t}:{ACC+4*t+3}] offset:{LDS_PART + t*1024}')
    a('s_waitcnt lgkmcnt(0)', 's_barrier')
    a('v_lshl_add_u32 v19, v2, 10, v7')
    for w in range(4):
        a(f'ds_read_b128 v[{80+4*w}:{83+4*w}], v19 offset:{LDS_PART + w*4096}')
    a('v_add_f32 v18, v18, v18')
    a(f'v_mov_b32 v28, {LDS_SP}')
    for w in range(4): a(f'ds_read_b64 v[{96+2*w}:{97+2*w}], v28 offset:{w*16+8}')
    a('s_waitcnt lgkmcnt(4)')
    for r in range(4):
        a(f'v_add_f32 v{80+r}, v{80+r}, v{84+r}', f'v_add_f32 v{88+r}, v{88+r}, v{92+r}')
    for r in range(4): a(f'v_add_f32 v{80+r}, v{80+r}, v{88+r}')
    for r in range(4): a(f'v_mul_f32 v{80+r}, v{80+r}, v18')
    a('v_cvt_pk_bf16_f32 v80, v80, v81', 'v_cvt_pk_bf16_f32 v82, v82, v83')
    a(f'ds_write_b16 v56, v80 offset:{LDS_KD}', f'ds_write_b16_d16_hi v57, v80 offset:{LDS_KD}',
      f'ds_write_b16 v58, v82 offset:{LDS_KD}', f'ds_write_b16_d16_hi v59, v82 offset:{LDS_KD}')
    a('s_waitcnt lgkmcnt(4)')
    a('v_pk_add_f32 v[96:97], v[96:97], v[98:99]', 'v_pk_add_f32 v[100:101], v[100:101], v[102:103]', 'v_pk_add_f32 v[96:97], v[96:97], v[100:101]',
      'v_add_f32 v96, v96, v97', 'v_mul_f32 v96, v96, v18', 'v_cvt_pk_bf16_f32 v96, v96, v96',
      f'v_mov_b32 v28, {LDS_KD + 4096}', 'ds_write_b16 v28, v96')
    a('s_waitcnt lgkmcnt(0)', 's_barrier')
    ST.stamp(5)
    for i in range(8): a(f'ds_read_u16 v{80+i}, v{48+i} offset:{LDS_KD}')
    a(f's_mul_i32 s32, s{d}, {RT_STRIDE}', 'v_lshlrev_b32 v7, 4, v0')
    a('s_waitcnt lgkmcnt(0)')
    for k in range(4): a(f'v_lshl_or_b32 v{88+k}, v{81+2*k}, 16, v{80+2*k}')
    a('buffer_store_dwordx4 v[88:91], v7, s[36:39], s32 offen')
    for k in range(4): a(f'v_mov_b32 v{92+k}, 0')
    a('v_cmp_gt_u32 vcc, 4, v0', 's_and_saveexec_b64 s[26:27], vcc', 's_cbranch_execz L_k1_end',
      's_add_u32 s32, s32, 4096', 'buffer_store_dwordx4 v[92:95], v7, s[36:39], s32 offen')
    a('s_branch L_k1_end')

def gen_k1(order=('kgen', 'stat', 'gemv')):
    a = Asm()
    global ST
    ST = Stamps(a, 0); ST.begin()
    sizes = dict(kgen=N_KGEN, stat=N_STAT, gemv=N_GEMV)
    base = 0
    for i, r in enumerate(order):
        a(f's_sub_u32 s3, s2, {base}', f's_cmp_lt_u32 s3, {sizes[r]}', f's_cbranch_scc1 L_k1_{r}')
        base += sizes[r]
    a('s_endpgm')
    for r in order:
        a.label(f'L_k1_{r}')
        dict(kgen=kgen_role, stat=stat_role, gemv=gemv_role)[r](a, 3)
    a.label('L_k1_end')
    ST.end('s3')
    a('s_endpgm')
    return kernel_text('k1_prep_kernel', a.finish(name='k1'), vgpr=128, sgpr=102 if STAMPS else 96)

if __name__ == '__main__':
    c, d = gen_k1()
    print(c[:3000])
```

```python
from common import *

N_CONV, N_WP, N_WD = 256, 86, 44
K2_GRID = N_CONV + N_WP + N_WD
CP = 512
CP_COPY, CP_CH = 4160, 4 * 4160
HL = CP + 2 * CP_CH
HL_CH = 288 * 16
UL = HL + 2 * HL_CH
UL_CH = 4096
XCH = UL + 2 * UL_CH
K2_LDS = XCH + 4 * 4096

def conv_role(a, idreg):
    a.comment('---- role: causal convolution of two channels + residual')
    a(f's_load_dwordx2 s[4:5], s[0:1], {KA["ws"]}', f's_load_dwordx2 s[6:7], s[0:1], {KA["dsk"]}')
    a(f's_and_b32 s24, s{idreg}, 7', 's_lshl_b32 s24, s24, 5', f's_lshr_b32 s25, s{idreg}, 3', 's_add_u32 s24, s24, s25', 's_lshl_b32 s24, s24, 1')
    a('v_lshlrev_b32 v1, 13, v0', 'v_lshlrev_b32 v2, 5, v0', 'v_lshlrev_b32 v3, 4, v0')
    a('s_lshl_b32 s25, s24, 4', f's_mul_i32 s26, s24, {RT_STRIDE}', f's_add_u32 s27, s26, {RT_STRIDE}', 's_lshl_b32 s28, s24, 2', 's_lshl_b32 s29, s24, 1')
    a('s_waitcnt lgkmcnt(0)')
    srd_off(a, 8, 4, WS_UB, 2048 * 1024); srd_off(a, 12, 4, WS_NEGM, 0x4000); srd_off(a, 16, 4, WS_RT, 512 * RT_STRIDE); srd_off(a, 20, 4, WS_X1T, 2048 * 1024)
    a('s_add_u32 s4, s4, s28', 's_addc_u32 s5, s5, 0')
    a('s_load_dwordx2 s[30:31], s[4:5], 0', 's_load_dwordx2 s[32:33], s[4:5], 2048', 's_load_dwordx2 s[34:35], s[4:5], 4096', 's_load_dword s36, s[6:7], s29')
    for ch in range(2):
        b = 16 + 12 * ch; so = 's26' if ch == 0 else 's27'
        a(f'buffer_load_dwordx4 v[{b}:{b+3}], v3, s[16:19], {so} offen', f'buffer_load_dwordx4 v[{b+4}:{b+7}], v3, s[16:19], {so} offen offset:4',
          f'buffer_load_dword v{b+8}, v3, s[16:19], {so} offen offset:20')
    a('buffer_load_dwordx4 v[40:43], v1, s[8:11], s25 offen', 'buffer_load_dwordx4 v[44:47], v1, s[8:11], s25 offen offset:16')
    a('s_mov_b32 s37, 0x2000')
    a('buffer_load_dwordx4 v[48:51], v2, s[12:15], 0 offen', 'buffer_load_dwordx4 v[52:55], v2, s[12:15], 0 offen offset:16',
      'buffer_load_dwordx4 v[56:59], v2, s[12:15], s37 offen', 'buffer_load_dwordx4 v[60:63], v2, s[12:15], s37 offen offset:16')
    for k in range(4): a(f'v_mov_b32 v{64+k}, 0')
    a('v_lshrrev_b32 v4, 4, v0', f'v_mul_u32_u24 v4, {CP_CH}, v4', 'v_bfe_u32 v5, v0, 2, 2', f'v_mul_u32_u24 v5, {CP_COPY}, v5', 'v_add_u32 v4, v4, v5',
      'v_and_b32 v5, 3, v0', 'v_lshl_add_u32 v4, v5, 4, v4',
      'v_cmp_gt_u32 vcc, 32, v0', 's_and_saveexec_b64 s[38:39], vcc', 's_cbranch_execz L_k2_z1',
      f'ds_write_b128 v4, v[64:67] offset:{CP + 4096}', 'L_k2_z1:', 's_mov_b64 exec, s[38:39]')
    a('v_lshrrev_b32 v4, 5, v0', f'v_mul_u32_u24 v4, {HL_CH}, v4', 'v_and_b32 v5, 31, v0', 'v_lshl_add_u32 v4, v5, 4, v4',
      'v_cmp_gt_u32 vcc, 64, v0', 's_and_saveexec_b64 s[38:39], vcc', 's_cbranch_execz L_k2_z2',
      f'ds_write_b128 v4, v[64:67] offset:{HL}', 'L_k2_z2:', 's_mov_b64 exec, s[38:39]')
    a('v_and_b32 v6, 63, v0', 'v_lshrrev_b32 v7, 6, v0', 'v_readfirstlane_b32 s40, v7')
    a('v_and_b32 v8, 15, v6', 'v_lshrrev_b32 v9, 4, v6')
    a('s_lshr_b32 s41, s40, 1', 's_and_b32 s42, s40, 1')
    a('v_sub_u32 v10, 3, v8', 'v_and_b32 v10, 3, v10', f'v_mul_u32_u24 v10, {CP_COPY}, v10',
      'v_lshrrev_b32 v11, 2, v8', 'v_lshlrev_b32 v12, 1, v9', 'v_sub_u32 v11, v12, v11', 'v_add_u32 v11, 507, v11', 'v_lshl_add_u32 v10, v11, 3, v10')
    a(f's_mul_i32 s43, s41, {CP_CH}', 's_lshl_b32 s44, s42, 8', 's_sub_u32 s43, s43, s44', f's_add_u32 s43, s43, {CP - 64*63}', 'v_add_u32 v10, s43, v10')
    a('v_lshl_add_u32 v11, v8, 1, v9', 'v_lshlrev_b32 v11, 4, v11',
      f's_mul_i32 s43, s41, {HL_CH}', 's_sub_u32 s43, s43, s44', f's_add_u32 s43, s43, {HL + 16*30 - 192}', 'v_add_u32 v11, s43, v11')
    a('v_lshlrev_b32 v12, 5, v8', 'v_lshl_add_u32 v12, v9, 3, v12')
    ST.stamp(1)
    cnt = 12
    for ch in range(2):
        b = 16 + 12 * ch
        a(f's_waitcnt vmcnt({9 if ch == 0 else 6})')
        base = CP + ch * CP_CH
        a(f'ds_write_b128 v3, v[{b}:{b+3}] offset:{base}', f'ds_write_b128 v3, v[{b+4}:{b+7}] offset:{base + 2*CP_COPY}')
        for k in range(3): a(f'v_alignbit_b32 v{64+k}, v{b+k+1}, v{b+k}, 16')
        a(f'v_alignbit_b32 v67, v{b+7}, v{b+3}, 16')
        for k in range(3): a(f'v_alignbit_b32 v{68+k}, v{b+4+k+1}, v{b+4+k}, 16')
        a(f'v_alignbit_b32 v71, v{b+8}, v{b+7}, 16')
        a(f'ds_write_b128 v3, v[64:67] offset:{base + CP_COPY}', f'ds_write_b128 v3, v[68:71] offset:{base + 3*CP_COPY}')
        if ch == 0: a('s_waitcnt lgkmcnt(0)')
    a('s_waitcnt lgkmcnt(0)')
    ST.stamp(2)
    a('v_mov_b32 v72, s30', 'v_mov_b32 v73, s31', 'v_add_f32 v74, 1.0, s32', 'v_add_f32 v75, 1.0, s33')
    round_bf16_pair(a, 74, 75, 74, 75, 76)
    a('s_waitcnt vmcnt(0)')
    for ch in range(2):
        U = 40 + 4 * ch
        sel = 'op_sel:[0,0,0] op_sel_hi:[1,0,0]' if ch == 0 else 'op_sel:[0,1,1] op_sel_hi:[1,1,1]'
        for k in range(4):
            a(f'v_lshlrev_b32 v{80+2*k}, 16, v{U+k}', f'v_and_b32 v{81+2*k}, 0xffff0000, v{U+k}')
        for k in range(4): a(f'v_pk_add_f32 v[{80+2*k}:{81+2*k}], v[{80+2*k}:{81+2*k}], v[{48+2*k}:{49+2*k}]')
        for k in range(4): a(f'v_pk_mul_f32 v[{80+2*k}:{81+2*k}], v[{80+2*k}:{81+2*k}], v[{56+2*k}:{57+2*k}]')
        for k in range(4): a(f'v_pk_fma_f32 v[{80+2*k}:{81+2*k}], v[{80+2*k}:{81+2*k}], v[74:75], v[72:73] {sel}')
        H = 88 + 4 * ch
        for k in range(4): a(f'v_cvt_pk_bf16_f32 v{H+k}, v{80+2*k}, v{81+2*k}')
        a(f'ds_write_b128 v3, v[{H}:{H+3}] offset:{HL + ch*HL_CH + 512}', f'ds_write_b128 v3, v[{U}:{U+3}] offset:{UL + ch*UL_CH}')
    a('s_lshl_b32 s46, s36, 16', 's_and_b32 s47, s36, 0xffff0000', 's_cmp_eq_u32 s41, 0',
      's_cselect_b32 s45, s34, s35', 's_cselect_b32 s46, s46, s47')
    a('s_waitcnt lgkmcnt(0)')
    ST.stamp(3)
    a('s_barrier')
    ST.stamp(4)
    ACC, G, F = 16, (48, 80), (112, 144)
    def loads(rr, buf):
        L = []
        for e in range(8): L.append(f'ds_read_b128 v[{G[buf]+4*e}:{G[buf]+4*e+3}], v11 offset:{512*e + 64*(3-rr)}')
        for p in range(8):
            o = 64 * (63 - rr - 8 * p)
            L.append(f'ds_read_b64 v[{F[buf]+4*p}:{F[buf]+4*p+1}], v10 offset:{o}')
            L.append(f'ds_read_b64 v[{F[buf]+4*p+2}:{F[buf]+4*p+3}], v10 offset:{o+8}')
        return L
    first = loads(0, 0)
    for l in first[:14]: a(l)
    pend = first[14:]
    for rr in range(4):
        buf = rr & 1
        nxt = loads(rr + 1, buf ^ 1) if rr < 3 else []
        q = list(pend) + nxt; pend = []
        issued = 0
        for p in range(8):
            for j in range(p, 8):
                if rr == 0 and j == p:
                    need_idx = 8 + 2 * p + 2
                    a(f's_waitcnt lgkmcnt({max(0, min(14, 14 + issued - need_idx))})')
                elif j == 0 and p == 0:
                    a('s_waitcnt lgkmcnt(0)')
                c = ACC + 4 * j
                src = '0' if (rr == 0 and p == 0) else f'v[{c}:{c+3}]'
                a(f'v_mfma_f32_16x16x32_bf16 v[{c}:{c+3}], v[{F[buf]+4*p}:{F[buf]+4*p+3}], v[{G[buf]+4*(j-p)}:{G[buf]+4*(j-p)+3}], {src}')
                if q:
                    a(q.pop(0)); issued += 1
        assert not q
    ST.stamp(5)
    a('s_lshl_b32 s43, s40, 12', 'v_lshlrev_b32 v13, 4, v6', 'v_add_u32 v14, s43, v13', 's_xor_b32 s43, s40, 1', 's_lshl_b32 s43, s43, 12', 'v_add_u32 v15, s43, v13')
    a(f's_mul_i32 s43, s41, {HL_CH}', 's_lshl_b32 s44, s42, 11', 's_add_u32 s43, s43, s44', 'v_add_u32 v48, s43, v12')
    a(f's_mul_i32 s43, s41, {UL_CH}', 's_add_u32 s43, s43, s44', 'v_add_u32 v49, s43, v12')
    for j in range(4):
        a(f'ds_read_b64 v[{80+2*j}:{81+2*j}], v48 offset:{HL + 512 + 512*j}', f'ds_read_b64 v[{88+2*j}:{89+2*j}], v49 offset:{UL + 512*j}')
    a('s_cmp_eq_u32 s42, 0', 's_cbranch_scc0 L_k2_h1')
    for j in range(4): a(f'ds_write_b128 v14, v[{ACC+16+4*j}:{ACC+16+4*j+3}] offset:{XCH + 1024*j}')
    for r in range(16): a(f'v_mov_b32 v{56+r}, v{ACC+r}')
    a('s_branch L_k2_h2', 'L_k2_h1:')
    for j in range(4): a(f'ds_write_b128 v14, v[{ACC+4*j}:{ACC+4*j+3}] offset:{XCH + 1024*j}')
    for r in range(16): a(f'v_mov_b32 v{56+r}, v{ACC+16+r}')
    a('L_k2_h2:', 's_waitcnt lgkmcnt(0)', 's_barrier')
    ST.stamp(6)
    for j in range(4): a(f'ds_read_b128 v[{96+4*j}:{99+4*j}], v15 offset:{XCH + 1024*j}')
    a('s_add_u32 s43, s24, s41', 's_lshl_b32 s43, s43, 12', 's_add_u32 s43, s43, s44')
    for j in range(4):
        a(f's_waitcnt lgkmcnt({3-j})')
        for r in range(4): a(f'v_add_f32 v{56+4*j+r}, v{56+4*j+r}, v{96+4*j+r}')
        a(f'v_lshlrev_b32 v112, 16, v{80+2*j}', f'v_and_b32 v113, 0xffff0000, v{80+2*j}', f'v_lshlrev_b32 v114, 16, v{81+2*j}', f'v_and_b32 v115, 0xffff0000, v{81+2*j}')
        a(f'v_lshlrev_b32 v116, 16, v{88+2*j}', f'v_and_b32 v117, 0xffff0000, v{88+2*j}', f'v_lshlrev_b32 v118, 16, v{89+2*j}', f'v_and_b32 v119, 0xffff0000, v{89+2*j}')
        for r in range(4): a(f'v_fma_f32 v{112+r}, v{112+r}, s46, v{56+4*j+r}')
        for r in range(4): a(f'v_fma_f32 v{112+r}, s45, v{112+r}, v{116+r}')
        a(f'v_cvt_pk_bf16_f32 v{120+2*j}, v112, v113', f'v_cvt_pk_bf16_f32 v{121+2*j}, v114, v115')
        a(f'buffer_store_dwordx2 v[{120+2*j}:{121+2*j}], v12, s[20:23], s43 offen offset:{512*j}')
    a('s_branch L_k2_end')

WP_T = 0
WP_CF = 32768
WP_PB = WP_CF + 2048
WP_Z = WP_PB + 2048
WP_CS = WP_Z + 64

def wp_role(a, idreg):
    a.comment("---- role: W' = bf16((1+cb) * W) in MFMA fragment order, column sums and bias for the folded LayerNorm-2")
    u = idreg
    a(f's_load_dwordx2 s[4:5], s[0:1], {KA["wg"]}', f's_load_dwordx2 s[6:7], s[0:1], {KA["wu"]}', f's_load_dwordx2 s[8:9], s[0:1], {KA["ws"]}')
    a('v_and_b32 v1, 63, v0', 'v_lshrrev_b32 v2, 6, v0', 'v_readfirstlane_b32 s40, v2')
    a('v_lshrrev_b32 v3, 1, v1', 'v_mul_u32_u24 v3, 2752, v3', 'v_and_b32 v4, 1, v1', 'v_lshl_add_u32 v3, v4, 4, v3')
    a(f's_mul_i32 s24, s40, {128*2752}', f's_lshl_b32 s25, s{u}, 5', 's_add_u32 s24, s24, s25', 's_lshl_b32 s26, s40, 13')
    a('v_lshlrev_b32 v5, 3, v0')
    a('s_waitcnt lgkmcnt(0)')
    srd(a, 12, 4, 512 * 2752); srd(a, 16, 6, 512 * 2752); srd_off(a, 20, 8, WS_MOD, 3072 * 4); srd_off(a, 28, 8, WS_WP, WS_WPX + 90 * 1024 - WS_WP)
    a('s_movk_i32 s27, 0x1800', 's_movk_i32 s33, 0x2000')
    a('buffer_load_dwordx2 v[6:7], v5, s[20:23], s27 offen', 'buffer_load_dwordx2 v[8:9], v5, s[20:23], s33 offen')
    for k in range(4):
        a(f's_add_u32 s32, s26, {k*1024}', 's_mov_b32 m0, s32', 'buffer_load_dwordx4 v3, s[12:15], s24 offen lds',
          f's_add_u32 s32, s26, {4096 + k*1024}', 's_mov_b32 m0, s32', 'buffer_load_dwordx4 v3, s[16:19], s24 offen lds')
        if k < 3: a(f's_add_u32 s24, s24, {32*2752}')
    a('v_lshrrev_b32 v10, 3, v0', 'v_lshlrev_b32 v10, 5, v10',
      'v_bfe_u32 v11, v0, 1, 1', 'v_lshl_add_u32 v10, v11, 4, v10',
      'v_and_b32 v11, 1, v0', 'v_bfe_u32 v12, v0, 2, 1', 'v_lshl_add_u32 v11, v12, 1, v11', 'v_lshl_add_u32 v10, v11, 2, v10')
    for k in range(4): a(f'v_mov_b32 v{12+k}, 0')
    a(f'v_mov_b32 v16, {WP_Z}', 'ds_write_b128 v16, v[12:15]')
    ST.stamp(1)
    a('s_waitcnt vmcnt(8)')
    ST.stamp(2)
    a('v_add_f32 v8, 1.0, v8', 'v_add_f32 v9, 1.0, v9', 'v_cvt_pk_bf16_f32 v16, v8, v9', 'v_cvt_pk_bf16_f32 v17, v6, v7',
      'v_lshlrev_b32 v8, 16, v16', 'v_and_b32 v9, 0xffff0000, v16')
    a(f'ds_write_b64 v5, v[8:9] offset:{WP_CF}', f'ds_write_b32 v10, v16 offset:{WP_PB}', f'ds_write_b32 v10, v17 offset:{WP_PB + 1024}')
    a('v_lshrrev_b32 v18, 4, v1', 'v_and_b32 v19, 1, v18', 'v_lshrrev_b32 v18, 1, v18',
      'v_and_b32 v20, 15, v1', 'v_lshrrev_b32 v21, 2, v20', 'v_lshl_add_u32 v21, v18, 2, v21', 'v_lshlrev_b32 v21, 5, v21',
      'v_lshl_add_u32 v21, v19, 12, v21', 'v_and_b32 v20, 3, v20', 'v_lshl_add_u32 v21, v20, 3, v21', 'v_add_u32 v21, s26, v21')
    a('v_lshrrev_b32 v22, 5, v1', 'v_lshlrev_b32 v23, 4, v22', 's_lshl_b32 s32, s40, 9', f's_add_u32 s32, s32, {WP_CF}', 'v_add_u32 v23, s32, v23')
    a('v_and_b32 v24, 31, v1', 'v_lshlrev_b32 v25, 10, v24', 'v_lshl_add_u32 v25, v22, 4, v25', 's_lshl_b32 s32, s40, 8', f's_add_u32 s32, s32, {WP_PB}', 'v_add_u32 v25, s32, v25',
      f'v_mov_b32 v26, {WP_Z}', 'v_cmp_gt_u32 vcc, 2, v24')
    a(f's_mul_i32 s34, s{u}, 43', 's_lshr_b32 s34, s34, 8', 's_mul_i32 s35, s34, 6', f's_sub_u32 s35, s{u}, s35', 's_lshl_b32 s35, s35, 11',
      f's_mul_i32 s34, s34, {WP_SLICE}', 's_add_u32 s35, s35, s34', f's_mul_i32 s34, s40, {4*12288}', 's_add_u32 s35, s35, s34',
      f's_lshl_b32 s34, s{u}, 10', f's_add_u32 s34, s34, {WS_WPX - WS_WP}', 'v_lshlrev_b32 v27, 4, v1')
    a('s_waitcnt vmcnt(0) lgkmcnt(0)', 's_barrier')
    ST.stamp(3)
    ACC = 96
    for s in range(8):
        T = 32 + 4 * (s & 1); Cq = 40 + 8 * (s & 1); PBr = 56 + 4 * (s & 1)
        a(f'ds_read_b64_tr_b16 v[{T}:{T+1}], v21 offset:{s*512}', f'ds_read_b64_tr_b16 v[{T+2}:{T+3}], v21 offset:{s*512+256}')
        a(f'ds_read_b128 v[{Cq}:{Cq+3}], v23 offset:{s*64}', f'ds_read_b128 v[{Cq+4}:{Cq+7}], v23 offset:{s*64+32}')
        a(f'v_add_u32 v28, {s*32}, v25', 'v_cndmask_b32 v28, v26, v28, vcc', f'ds_read_b128 v[{PBr}:{PBr+3}], v28')
        a('s_waitcnt lgkmcnt(0)')
        src = '0' if s == 0 else f'v[{ACC}:{ACC+15}]'
        a(f'v_mfma_f32_32x32x16_bf16 v[{ACC}:{ACC+15}], v[{T}:{T+3}], v[{PBr}:{PBr+3}], {src}')
        for k in range(4):
            a(f'v_lshlrev_b32 v{64+2*k}, 16, v{T+k}', f'v_and_b32 v{65+2*k}, 0xffff0000, v{T+k}')
        for k in range(8): a(f'v_mul_f32 v{64+k}, v{64+k}, v{Cq+k}')
        O = 72 + 4 * (s & 1)
        for k in range(4): a(f'v_cvt_pk_bf16_f32 v{O+k}, v{64+2*k}, v{65+2*k}')
        if s % 2 == 0 and s > 0: a('s_add_u32 s35, s35, 12288')
        a(f'buffer_store_dwordx4 v[{O}:{O+3}], v27, s[28:31], s35 offen offset:{(s%2)*1024}')
    ST.stamp(4)
    a('s_lshl_b32 s32, s40, 8', f's_add_u32 s32, s32, {WP_CS}',
      'v_lshlrev_b32 v28, 7, v24', 'v_lshl_add_u32 v28, v22, 4, v28', 'v_add_u32 v28, s32, v28',
      's_and_saveexec_b64 s[38:39], vcc')
    for q in range(4): a(f'ds_write_b128 v28, v[{ACC+4*q}:{ACC+4*q+3}] offset:{32*q}')
    a('s_mov_b64 exec, s[38:39]', 'v_lshlrev_b32 v28, 2, v24', 'v_add_u32 v28, s32, v28', 's_waitcnt lgkmcnt(0)',
      'ds_read_b32 v32, v28', 'ds_read_b32 v33, v28 offset:128', 's_waitcnt lgkmcnt(0)')
    a('v_cvt_pk_bf16_f32 v34, v32, v33', 'v_lshlrev_b32 v36, 16, v34', 'v_and_b32 v37, 0xffff0000, v34',
      'v_sub_f32 v32, v32, v36', 'v_sub_f32 v33, v33, v37', 'v_cvt_pk_bf16_f32 v35, v32, v33',
      's_mov_b32 s32, 0x05040100', 's_mov_b32 s33, 0x07060302', 'v_perm_b32 v36, v35, v34, s32', 'v_perm_b32 v37, v35, v34, s33')
    a('s_lshr_b32 s32, s40, 1', 's_lshl_b32 s32, s32, 9', 's_and_b32 s33, s40, 1', 's_lshl_b32 s33, s33, 3', 's_add_u32 s32, s32, s33',
      's_add_u32 s32, s32, s34', 'v_lshlrev_b32 v28, 4, v24',
      'v_cmp_gt_u32 vcc, 32, v1', 's_and_saveexec_b64 s[38:39], vcc',
      'buffer_store_dwordx2 v[36:37], v28, s[28:31], s32 offen', 's_branch L_k2_end')

def wd_role(a, idreg):
    a.comment('---- role: w_down in MFMA fragment order')
    a(f's_load_dwordx2 s[4:5], s[0:1], {KA["wd"]}', f's_load_dwordx2 s[8:9], s[0:1], {KA["ws"]}')
    a('v_and_b32 v1, 63, v0', 'v_lshrrev_b32 v2, 6, v0', 'v_readfirstlane_b32 s40, v2')
    a('v_lshrrev_b32 v3, 3, v1', 'v_lshlrev_b32 v3, 10, v3', 'v_and_b32 v4, 7, v1', 'v_lshl_add_u32 v3, v4, 4, v3')
    a(f's_lshl_b32 s24, s{idreg}, 2', 's_add_u32 s24, s24, s40', 's_and_b32 s25, s24, 7', 's_lshr_b32 s24, s24, 3', 's_lshl_b32 s24, s24, 2')
    a('s_lshl_b32 s26, s24, 14', 's_lshl_b32 s27, s25, 7', 's_add_u32 s26, s26, s27', 's_lshl_b32 s28, s40, 13')
    a('s_waitcnt lgkmcnt(0)')
    srd(a, 12, 4, 1376 * 1024); srd_off(a, 16, 8, WS_WDP, 16 * WDP_TILE)
    for it in range(4):
        for hf in range(2):
            a(f's_add_u32 s32, s28, {it*2048 + hf*1024}', 's_mov_b32 m0, s32', 'buffer_load_dwordx4 v3, s[12:15], s26 offen lds', 's_add_u32 s26, s26, 8192')
    a('v_lshrrev_b32 v18, 4, v1', 'v_and_b32 v19, 1, v18', 'v_lshrrev_b32 v18, 1, v18', 'v_and_b32 v20, 15, v1', 'v_lshrrev_b32 v21, 2, v20',
      'v_lshl_add_u32 v21, v18, 2, v21', 'v_lshlrev_b32 v21, 7, v21', 'v_lshl_add_u32 v21, v19, 5, v21', 'v_and_b32 v20, 3, v20', 'v_lshl_add_u32 v21, v20, 3, v21', 'v_add_u32 v21, s28, v21')
    a(f's_mul_i32 s34, s25, {2*WDP_TILE}', 's_lshl_b32 s35, s24, 10', 's_add_u32 s34, s34, s35', f's_add_u32 s36, s34, {WDP_TILE}', 'v_lshlrev_b32 v27, 4, v1')
    a('s_waitcnt vmcnt(0)')
    for it in range(4):
        for dt in range(2):
            T = 32 + 8 * it + 4 * dt
            a(f'ds_read_b64_tr_b16 v[{T}:{T+1}], v21 offset:{it*2048 + dt*64}', f'ds_read_b64_tr_b16 v[{T+2}:{T+3}], v21 offset:{it*2048 + dt*64 + 1024}')
    a('s_waitcnt lgkmcnt(0)')
    for it in range(4):
        if it > 0:
            a(f's_add_u32 s35, s24, {it}', 's_cmp_ge_u32 s35, 86', 's_cbranch_scc1 L_k2_end')
        for dt in range(2):
            T = 32 + 8 * it + 4 * dt
            a(f'buffer_store_dwordx4 v[{T}:{T+3}], v27, s[16:19], {"s34" if dt == 0 else "s36"} offen offset:{it*1024}')
    a('s_branch L_k2_end')

def gen_k2():
    a = Asm()
    global ST
    ST = Stamps(a, 1); ST.begin()
    base = 0
    for r, n in (('conv', N_CONV), ('wp', N_WP), ('wd', N_WD)):
        a(f's_sub_u32 s3, s2, {base}', f's_cmp_lt_u32 s3, {n}', f's_cbranch_scc1 L_k2_{r}')
        base += n
    a('s_endpgm')
    for r, fn in (('conv', conv_role), ('wp', wp_role), ('wd', wd_role)):
        a.label(f'L_k2_{r}')
        fn(a, 3)
    a.label('L_k2_end')
    ST.end('s3')
    a('s_endpgm')
    return kernel_text('k2_conv_kernel', a.finish(name='k2'), vgpr=176, sgpr=102 if STAMPS else 96)
```

```python
from common import *

K3_GRID, K3_BLOCK = 256, 512
NS, STAGE = 7, 20480
EXCH = NS * STAGE
K3_LDS = EXCH + 8 * 256

ACC, XA, XB, YA, YB, XF = 16, 64, 76, 80, 92, 96
S1A, S1B, S2A, S2B, T0 = 108, 109, 110, 111, 112
VA0, VB0, VA, VB, VW, VX1, VX2, VL = 1, 2, 3, 4, 5, 6, 7, 8

C1 = -2.0 * 0.7978845608028654 * LOG2E
C2 = C1 * 0.044715

def srd_reg(a, base, pair, off, sreg, nbytes):
    a(f's_add_u32 s{base}, s{pair}, {hex(off)}', f's_addc_u32 s{base+1}, s{pair+1}, 0',
      f's_add_u32 s{base}, s{base}, s{sreg}', f's_addc_u32 s{base+1}, s{base+1}, 0',
      f's_and_b32 s{base+1}, s{base+1}, 0xffff',
      f's_mov_b32 s{base+2}, {hex(nbytes)}', f's_mov_b32 s{base+3}, 0x00020000')

def a_off(ui, sp):
    p = 2 * ui + sp
    return (p // 3) * 5120 + (p % 3) * 1024

def reads(mg, sp, A, B):
    L = [f'ds_read_b128 v[{A+4*j}:{A+4*j+3}], v{VA} offset:{a_off(3*mg+j, sp)}' for j in range(3)]
    L += [f'ds_read_b64_tr_b16 v[{B}:{B+1}], v{VB} offset:{2*sp*5120}', f'ds_read_b64_tr_b16 v[{B+2}:{B+3}], v{VB} offset:{(2*sp+1)*5120}']
    return L

def stat(regs):
    L = []
    for k, r in enumerate(regs):
        lo, hi = T0 + 2 * (k & 1), T0 + 2 * (k & 1) + 1
        L += [f'v_lshlrev_b32 v{lo}, 16, v{r}', f'v_and_b32 v{hi}, 0xffff0000, v{r}',
              f'v_add_f32 v{S1A}, v{S1A}, v{lo}', f'v_add_f32 v{S1B}, v{S1B}, v{hi}',
              f'v_fma_f32 v{S2A}, v{lo}, v{lo}, v{S2A}', f'v_fma_f32 v{S2B}, v{hi}, v{hi}, v{S2B}']
    return L

def dma_chunk():
    return ['s_add_u32 m0, s44, s46',
            f'buffer_load_dwordx4 v{VW}, s[8:11], s48 offen lds',
            f'buffer_load_dwordx4 v{VW}, s[8:11], s48 offen offset:1024 lds',
            f'buffer_load_dwordx4 v{VW}, s[8:11], s48 offen offset:2048 lds',
            's_add_u32 m0, m0, 3072',
            f'buffer_load_dwordx4 v{VX1}, s[12:15], s49 offen lds',
            f'buffer_load_dwordx4 v{VX2}, s[12:15], s49 offen offset:1024 lds',
            's_add_u32 s48, s48, 12288', 's_add_u32 s49, s49, 0x20000']

def mfma(j, A, B):
    c = ACC + 16 * j
    return f'v_mfma_f32_32x32x16_bf16 v[{c}:{c+15}], v[{A+4*j}:{A+4*j+3}], v[{B}:{B+3}], v[{c}:{c+15}]'

def half(a, A, B, fill):
    n = len(fill); cut = [0, (n + 2) // 3, (2 * n + 2) // 3, n]
    for j in range(3):
        a(mfma(j, A, B))
        a(*fill[cut[j]:cut[j + 1]])

def main_loop(a, mg):
    nxt = ['s_add_u32 s47, s44, %d' % STAGE, 's_cmp_eq_u32 s47, %d' % EXCH, 's_cselect_b32 s47, 0, s47']
    upd = [f'v_add_u32 v{VA}, s47, v{VA0}', f'v_add_u32 v{VB}, s47, v{VB0}']
    a.label(f'L_k3_loop{mg}')
    a('s_waitcnt lgkmcnt(0)')
    st = stat([XB, XB + 1] if mg == 0 else [XB + 2, XB + 3])
    ry = reads(mg, 1, YA, YB)
    half(a, XA, XB, ry + nxt + st + upd)
    a('s_waitcnt vmcnt(25) lgkmcnt(0)' if mg == 0 else 's_waitcnt lgkmcnt(0)', 's_barrier')
    rx = reads(mg, 0, XA, XB)
    if mg == 0:
        d = dma_chunk()
        fill = rx + d + stat([YB])
    else:
        fill = rx + stat([YB + 1, YB + 2, YB + 3])
    fill += ['s_mov_b32 s44, s47', 's_add_u32 s43, s43, 1', 's_cmp_lt_u32 s43, 16']
    half(a, YA, YB, fill)
    a(f's_cbranch_scc1 L_k3_loop{mg}')

def gen_k3():
    a = Asm()
    ST = Stamps(a, 2); ST.begin()
    a('s_cmp_ge_u32 s2, 256', 's_cbranch_scc1 L_k3_exit')
    a('s_and_b32 s24, s2, 7', 's_lshr_b32 s25, s2, 3',
      's_and_b32 s26, s24, 3', 's_lshl_b32 s26, s26, 2', 's_and_b32 s27, s25, 3', 's_add_u32 s26, s26, s27',
      's_lshr_b32 s27, s24, 2', 's_lshl_b32 s27, s27, 3', 's_lshr_b32 s28, s25, 2', 's_add_u32 s27, s27, s28',
      's_cmp_ge_u32 s27, 15', 's_cbranch_scc1 L_k3_exit')
    a(f's_load_dwordx2 s[4:5], s[0:1], {KA["ws"]}')
    a(f'v_and_b32 v{VL}, 63, v0', 'v_lshrrev_b32 v9, 6, v0', 'v_readfirstlane_b32 s40, v9')
    a('s_and_b32 s41, s40, 3', 's_lshr_b32 s42, s40, 2', f's_mul_i32 s28, s27, {WP_SLICE}', 's_mul_i32 s46, s41, 5120')
    a(f'v_lshlrev_b32 v{VA0}, 4, v{VL}',
      f'v_bfe_u32 v10, v{VL}, 2, 2', 'v_add_u32 v11, s41, v10', 'v_and_b32 v11, 3, v11', 'v_lshlrev_b32 v11, 6, v11',
      'v_lshl_add_u32 v11, v10, 8, v11',
      f'v_bfe_u32 v10, v{VL}, 4, 1', 'v_lshl_add_u32 v11, v10, 5, v11',
      f'v_and_b32 v10, 3, v{VL}', 'v_lshl_add_u32 v11, v10, 3, v11',
      f'v_lshrrev_b32 v10, 5, v{VL}', 'v_lshl_add_u32 v11, v10, 10, v11', f'v_add_u32 v{VB0}, 3072, v11')
    a(f's_mul_i32 s29, s41, 3072', f'v_add_u32 v{VW}, s29, v{VA0}',
      f'v_lshrrev_b32 v10, 4, v{VL}', f'v_lshlrev_b32 v11, 2, v10', f'v_sub_u32 v11, v{VL}, v11', 'v_and_b32 v11, 15, v11', 'v_lshlrev_b32 v11, 4, v11',
      'v_lshl_add_u32 v11, v10, 12, v11', 's_lshl_b32 s29, s41, 15', 's_lshl_b32 s30, s26, 8', 's_add_u32 s29, s29, s30',
      f'v_add_u32 v{VX1}, s29, v11', f'v_add_u32 v{VX2}, {4*4096 - 1024}, v{VX1}')
    a('s_mul_i32 s30, s27, 6', 's_mul_i32 s31, s42, 3', 's_add_u32 s30, s30, s31', 's_lshl_b32 s31, s30, 10')
    a('s_waitcnt lgkmcnt(0)')
    srd_reg(a, 8, 4, WS_WP, 28, WP_SLICE); srd_off(a, 12, 4, WS_X1T, 2048 * 1024)
    srd_off(a, 16, 4, WS_WPX, 90 * 1024); srd_off(a, 20, 4, WS_ACT, 64 * ACT_TILE)
    for j in range(3):
        a(f'buffer_load_dwordx4 v[{XF+4*j}:{XF+4*j+3}], v{VA0}, s[16:19], s31 offen offset:{1024*j}')
    a('s_mov_b32 s48, 0', 's_mov_b32 s49, 0', 's_mov_b32 s44, 0', 's_cmp_eq_u32 s42, 0', 's_cbranch_scc0 L_k3_pro')
    for c in range(NS):
        a(*dma_chunk())
        a(f's_add_u32 s44, s44, {STAGE}')
    a.label('L_k3_pro')
    for r in range(48): a(f'v_mov_b32 v{ACC+r}, 0')
    for r in (S1A, S1B, S2A, S2B): a(f'v_mov_b32 v{r}, 0')
    a(f'v_mov_b32 v{VA}, v{VA0}', f'v_mov_b32 v{VB}, v{VB0}', 's_mov_b32 s44, 0', 's_mov_b32 s43, 0')
    ST.stamp(1)
    a('s_waitcnt vmcnt(30)', 's_barrier')
    ST.stamp(2)
    a('s_cmp_eq_u32 s42, 0', 's_cbranch_scc0 L_k3_p1')
    a(*reads(0, 0, XA, XB))
    main_loop(a, 0)
    a('s_branch L_k3_fin')
    a.label('L_k3_p1')
    a(*reads(1, 0, XA, XB))
    main_loop(a, 1)
    a.label('L_k3_fin')
    ST.stamp(3)
    a(f'v_add_f32 v{S1A}, v{S1A}, v{S1B}', f'v_add_f32 v{S2A}, v{S2A}, v{S2B}',
      f'v_permlane32_swap_b32 v{S1A}, v{S2A}', f'v_add_f32 v{S1A}, v{S1A}, v{S2A}')
    a('s_lshl_b32 s32, s40, 8', f's_add_u32 s32, s32, {EXCH}', f'v_lshl_add_u32 v10, v{VL}, 2, s32', f'ds_write_b32 v10, v{S1A}',
      f'v_and_b32 v11, 31, v{VL}', 'v_lshl_add_u32 v10, v11, 2, s32', 's_xor_b32 s33, s40, 4', 's_lshl_b32 s33, s33, 8', f's_add_u32 s33, s33, {EXCH}',
      'v_lshl_add_u32 v11, v11, 2, s33')
    a('s_waitcnt vmcnt(0) lgkmcnt(0)', 's_barrier')
    a('ds_read2_b32 v[64:65], v10 offset1:32', 'ds_read2_b32 v[66:67], v11 offset1:32', 's_waitcnt lgkmcnt(0)')
    a('v_add_f32 v64, v64, v66', 'v_add_f32 v65, v65, v67',
      f'v_mul_f32 v64, {fhex(1/512)}, v64', f'v_mul_f32 v65, {fhex(1/512)}, v65',
      'v_fma_f32 v65, -v64, v64, v65', 'v_max_f32 v65, 0, v65',
      'v_cvt_pk_bf16_f32 v68, -v64, -v64',
      'v_cvt_pk_bf16_f32 v65, v65, v65', 'v_and_b32 v65, 0xffff0000, v65', f'v_add_f32 v65, {fhex(1e-5)}, v65',
      'v_cvt_pk_bf16_f32 v65, v65, v65', 'v_and_b32 v65, 0xffff0000, v65', 'v_sqrt_f32 v65, v65',
      'v_cvt_pk_bf16_f32 v69, v65, v65', 'v_mov_b32 v70, v68', 'v_mov_b32 v71, v69')
    for j in range(3):
        c = ACC + 16 * j
        a(f'v_mfma_f32_32x32x16_bf16 v[{c}:{c+15}], v[{XF+4*j}:{XF+4*j+3}], v[68:71], v[{c}:{c+15}]')
    a('v_and_b32 v65, 0xffff0000, v69', 'v_rcp_f32 v66, v65', 'v_mul_f32 v74, v65, v65',
      f'v_mul_f32 v72, {fhex(C1)}, v66', 'v_mul_f32 v73, v66, v66', 'v_mul_f32 v73, v73, v66', f'v_mul_f32 v73, {fhex(C2)}, v73')
    a(f's_lshl_b32 s32, s26, 2', 's_add_u32 s32, s32, s41', f's_mul_i32 s32, s32, {ACT_TILE}', 's_add_u32 s32, s32, s31')
    ST.stamp(4)
    for j in range(3):
        c = ACC + 16 * j
        G = lambda k: f'v[{c+2*k}:{c+2*k+1}]'
        U = lambda k: f'v[{c+8+2*k}:{c+8+2*k+1}]'
        T = lambda k: f'v[{80+2*k}:{81+2*k}]'
        for k in range(4): a(f'v_pk_mul_f32 {T(k)}, {G(k)}, {G(k)}')
        for k in range(4): a(f'v_pk_fma_f32 {T(k)}, {T(k)}, v[72:73], v[72:73] op_sel:[0,1,0] op_sel_hi:[1,1,0]')
        for k in range(4): a(f'v_pk_mul_f32 {T(k)}, {T(k)}, {G(k)}')
        for k in range(8): a(f'v_exp_f32 v{80+k}, v{80+k}')
        for k in range(4): a(f'v_pk_mul_f32 {G(k)}, {G(k)}, {U(k)}')
        for k in range(4): a(f'v_pk_fma_f32 {T(k)}, {T(k)}, v[74:75], v[74:75] op_sel_hi:[1,0,0]')
        for k in range(8): a(f'v_rcp_f32 v{80+k}, v{80+k}')
        for k in range(4): a(f'v_pk_mul_f32 {G(k)}, {G(k)}, {T(k)}')
        O = 88 + 4 * (j & 1)
        for k in range(4): a(f'v_cvt_pk_bf16_f32 v{O+k}, v{c+2*k}, v{c+2*k+1}')
        a(f's_add_u32 s33, s30, {j}', 's_cmp_lt_u32 s33, 86', f's_cbranch_scc0 L_k3_done')
        a(f'buffer_store_dwordx4 v[{O}:{O+3}], v{VA0}, s[20:23], s32 offen offset:{1024*j}')
    a.label('L_k3_done')
    ST.end('s27')
    a.label('L_k3_exit')
    a('s_endpgm')
    return kernel_text('k3_ffn1_kernel', a.finish(name='k3'), vgpr=128, sgpr=102 if STAMPS else 96)
```

```python
from common import *
from k3 import srd_reg

K4_GRID, K4_BLOCK = 256, 512
NS, STAGE = 8, 16384
EXCH = NS * STAGE
K4_LDS = EXCH + 8 * 2048
NSTAGE = 22

ACC, XA, XB, YA, YB, X1, GB = 16, 32, 36, 40, 44, 48, 56
VL, VA0, VB0, VA, VB, VD = 1, 2, 3, 4, 5, 6

def gen_k4():
    a = Asm()
    ST = Stamps(a, 3); ST.begin()
    a('s_cmp_ge_u32 s2, 256', 's_cbranch_scc1 L_k4_exit')
    a(f's_load_dwordx2 s[4:5], s[0:1], {KA["ws"]}', f's_load_dwordx2 s[6:7], s[0:1], {KA["out"]}')
    a('s_and_b32 s24, s2, 7', 's_lshr_b32 s25, s2, 3', 's_lshl_b32 s24, s24, 2', 's_and_b32 s26, s25, 3', 's_add_u32 s26, s26, s24',
      's_lshr_b32 s27, s25, 2')
    a(f'v_and_b32 v{VL}, 63, v0', 'v_lshrrev_b32 v9, 6, v0', 'v_readfirstlane_b32 s40, v9')
    a('s_and_b32 s41, s40, 1', 's_bfe_u32 s42, s40, 0x10001', 's_lshr_b32 s43, s40, 2')
    a('s_lshl_b32 s28, s27, 1', 's_add_u32 s28, s28, s42', f's_mul_i32 s28, s28, {WDP_TILE}', f's_add_u32 s28, s28, {WS_WDP}',
      's_lshl_b32 s29, s26, 1', 's_add_u32 s29, s29, s42', f's_mul_i32 s29, s29, {ACT_TILE}', f's_add_u32 s29, s29, {WS_ACT}',
      's_cmp_eq_u32 s43, 0', 's_cselect_b32 s28, s28, s29')
    a(f'v_lshlrev_b32 v{VA0}, 4, v{VL}', 's_lshl_b32 s29, s41, 11', f'v_add_u32 v{VD}, s29, v{VA0}', 's_lshl_b32 s46, s40, 11')
    a('s_lshl_b32 s30, s43, 11', 's_lshl_b32 s31, s42, 12', 's_add_u32 s31, s31, s30', 's_add_u32 s31, s31, 8192', f'v_add_u32 v{VB0}, s31, v{VA0}',
      's_lshl_b32 s31, s41, 12', 's_add_u32 s31, s31, s30', f'v_add_u32 v{VA0}, s31, v{VA0}')
    a('s_lshl_b32 s32, s27, 6', 's_lshl_b32 s33, s41, 5', 's_add_u32 s32, s32, s33', 's_lshl_b32 s33, s43, 4', 's_add_u32 s32, s32, s33',
      's_lshl_b32 s33, s26, 6', 's_lshl_b32 s34, s42, 5', 's_add_u32 s33, s33, s34')
    a(f'v_and_b32 v10, 31, v{VL}', f'v_lshrrev_b32 v11, 5, v{VL}',
      'v_lshlrev_b32 v12, 1, v10', 'v_lshl_add_u32 v12, v11, 14, v12',
      'v_lshlrev_b32 v13, 4, v11',
      'v_lshl_add_u32 v14, v10, 10, v13')
    for k in range(8): a(f'v_mov_b32 v{X1+k}, 0')
    a('s_lshl_b32 s35, s32, 12', 's_lshl_b32 s36, s33, 1', 's_add_u32 s35, s35, s36', 's_lshl_b32 s36, s32, 2', f's_add_u32 s36, s36, {5*2048}',
      's_lshl_b32 s37, s33, 10', 's_lshl_b32 s38, s32, 1', 's_add_u32 s37, s37, s38')
    a('s_waitcnt lgkmcnt(0)')
    srd_reg(a, 8, 4, 0, 28, 86 * 1024); srd_off(a, 12, 4, WS_X1T, 2048 * 1024); srd_off(a, 16, 4, WS_MOD, 3072 * 4); srd(a, 20, 6, 2048 * 1024)
    def dma():
        return ['s_add_u32 m0, s44, s46', f'buffer_load_dwordx4 v{VD}, s[8:11], s48 offen lds',
                f'buffer_load_dwordx4 v{VD}, s[8:11], s48 offen offset:1024 lds', 's_add_u32 s48, s48, 4096']
    a('s_mov_b32 s48, 0', 's_mov_b32 s44, 0')
    for c in range(NS):
        a(*dma())
        a(f's_add_u32 s44, s44, {STAGE}')
    for k in range(8):
        a(f's_add_u32 s39, s35, {(8*(k>>2) + (k&3))*4096}', f'buffer_load_short_d16_hi v{X1+k}, v12, s[12:15], s39 offen')
    for q in range(2): a(f'buffer_load_dwordx4 v[{GB+4*q}:{GB+4*q+3}], v13, s[16:19], s36 offen offset:{32*q}')
    for r in range(16): a(f'v_mov_b32 v{ACC+r}, 0')
    a(f'v_mov_b32 v{VA}, v{VA0}', f'v_mov_b32 v{VB}, v{VB0}', 's_mov_b32 s44, 0', 's_mov_b32 s45, 0')
    ST.stamp(1)
    a(f's_waitcnt vmcnt({2*(NS-1) + 10})', 's_barrier')
    ST.stamp(2)
    a(f'ds_read_b128 v[{XA}:{XA+3}], v{VA}', f'ds_read_b128 v[{XB}:{XB+3}], v{VB}')
    c = f'v[{ACC}:{ACC+15}]'
    def body(wait, label=None):
        a('s_waitcnt lgkmcnt(0)', f'v_mfma_f32_32x32x16_bf16 {c}, v[{XA}:{XA+3}], v[{XB}:{XB+3}], {c}',
          f'ds_read_b128 v[{YA}:{YA+3}], v{VA} offset:1024', f'ds_read_b128 v[{YB}:{YB+3}], v{VB} offset:1024',
          f's_add_u32 s47, s44, {STAGE}', f's_cmp_eq_u32 s47, {EXCH}', 's_cselect_b32 s47, 0, s47',
          f'v_add_u32 v{VA}, s47, v{VA0}', f'v_add_u32 v{VB}, s47, v{VB0}',
          f's_waitcnt vmcnt({wait}) lgkmcnt(0)', 's_barrier',
          f'v_mfma_f32_32x32x16_bf16 {c}, v[{YA}:{YA+3}], v[{YB}:{YB+3}], {c}',
          f'ds_read_b128 v[{XA}:{XA+3}], v{VA}', f'ds_read_b128 v[{XB}:{XB+3}], v{VB}')
        a(*dma())
        a('s_mov_b32 s44, s47', 's_add_u32 s45, s45, 1')
    a.label('L_k4_loopa')
    body(2 * (NS - 2) + 10)
    a(f's_cmp_lt_u32 s45, {NS-1}', 's_cbranch_scc1 L_k4_loopa')
    a.label('L_k4_loopb')
    body(2 * (NS - 2))
    a(f's_cmp_lt_u32 s45, {NSTAGE}', 's_cbranch_scc1 L_k4_loopb')
    ST.stamp(3)
    a(f'v_lshlrev_b32 v10, 4, v{VL}', f's_add_u32 s30, s46, {EXCH}', 'v_add_u32 v11, s30, v10', 's_xor_b32 s31, s40, 4', 's_lshl_b32 s31, s31, 11',
      f's_add_u32 s31, s31, {EXCH}', 'v_add_u32 v10, s31, v10')
    a('s_cmp_eq_u32 s43, 0', 's_cbranch_scc0 L_k4_h1')
    a(f'ds_write_b128 v11, v[{ACC+8}:{ACC+11}]', f'ds_write_b128 v11, v[{ACC+12}:{ACC+15}] offset:1024', 's_branch L_k4_h2')
    a.label('L_k4_h1')
    a(f'ds_write_b128 v11, v[{ACC}:{ACC+3}]', f'ds_write_b128 v11, v[{ACC+4}:{ACC+7}] offset:1024')
    for k in range(8): a(f'v_mov_b32 v{ACC+k}, v{ACC+8+k}')
    a.label('L_k4_h2')
    a('s_waitcnt vmcnt(0) lgkmcnt(0)', 's_barrier')
    a(f'ds_read_b128 v[{XA}:{XA+3}], v10', f'ds_read_b128 v[{XA+4}:{XA+7}], v10 offset:1024', 's_waitcnt lgkmcnt(0)')
    for k in range(8): a(f'v_add_f32 v{ACC+k}, v{ACC+k}, v{XA+k}')
    for k in range(8): a(f'v_fma_f32 v{ACC+k}, v{GB+k}, v{ACC+k}, v{X1+k}')
    for k in range(4): a(f'v_cvt_pk_bf16_f32 v{YA+k}, v{ACC+2*k}, v{ACC+2*k+1}')
    a(f'v_permlane32_swap_b32 v{YA}, v{YA+2}', f'v_permlane32_swap_b32 v{YA+1}, v{YA+3}')
    a(f'buffer_store_dwordx4 v[{YA}:{YA+3}], v14, s[20:23], s37 offen')
    ST.end('s27')
    a.label('L_k4_exit')
    a('s_endpgm')
    return kernel_text('k4_ffn2_kernel', a.finish(name='k4'), vgpr=64, sgpr=102 if STAMPS else 96)
```

```python
import sys, importlib
sys.path.insert(0, 'gen')
HEADER = open('adaLN_cond__ssm_conv_s4d__geglu_ffn__prompt.s.ref').read().split('; Override launch geometry')[0]

def build(kernels, path):
    s = HEADER
    for name, grid, block, lds, _ in kernels:
        s += f'; @launch kernel={name} grid=({grid},1,1) block=({block},1,1) lds={lds}\n'
    s += '.amdgcn_target "amdgcn-amd-amdhsa--gfx950"\n'
    seen = []
    for name, _, _, _, (c, d) in kernels:
        if name not in seen: s += c
        seen.append(name)
    seen = []
    for name, _, _, _, (c, d) in kernels:
        if name not in seen: s += d
        seen.append(name)
    open(path, 'w').write(s)
    return s

def all_kernels(upto=4, **opt):
    import k1
    ks = [('k1_prep_kernel', k1.K1_GRID, 256, k1.K1_LDS, k1.gen_k1())]
    if upto >= 2:
        import k2
        ks.append(('k2_conv_kernel', k2.K2_GRID, 256, k2.K2_LDS, k2.gen_k2()))
    if upto >= 3:
        import k3
        ks.append(('k3_ffn1_kernel', k3.K3_GRID, k3.K3_BLOCK, k3.K3_LDS, k3.gen_k3()))
    if upto >= 4:
        import k4
        ks.append(('k4_ffn2_kernel', k4.K4_GRID, k4.K4_BLOCK, k4.K4_LDS, k4.gen_k4()))
    return ks

if __name__ == '__main__':
    upto = int(sys.argv[1]) if len(sys.argv) > 1 else 4
    path = sys.argv[2] if len(sys.argv) > 2 else 'dev.s'
    build(all_kernels(upto), path)
    print('wrote', path)
```

```python
from asm import *

KA = dict(u=0, lar=8, aim=16, cre=24, cim=32, ldt=40, dsk=48, bx=56, wg=64, wu=72, wd=80, c=88, wmod=96, out=104, dbg=112, ws=120)

WS_MOD  = 0x000000
WS_NEGM = 0x004000
WS_RINV = 0x006000
WS_UB   = 0x010000
WS_RT   = 0x210000
RT_STRIDE = 4160
WS_X1T  = 0x420000
WS_WP   = 0x620000
WP_SLICE = 16 * 12288
WS_WPX  = 0x8F0000
WS_WDP  = 0x920000
WDP_TILE = 86 * 1024
WS_ACT  = 0xA80000
ACT_TILE = 86 * 1024
WS_END  = 0xFE0000
WS_BYTES = 0x10000000

LOG2E = 1.4426950408889634

def f2u(x):
    import struct
    return struct.unpack('<I', struct.pack('<f', x))[0]
def fhex(x): return hex(f2u(x))

def srd(a, base, pair, nbytes):
    a(f's_mov_b32 s{base}, s{pair}', f's_and_b32 s{base+1}, s{pair+1}, 0xffff',
      f's_mov_b32 s{base+2}, {hex(nbytes)}', f's_mov_b32 s{base+3}, 0x00020000')

def srd_off(a, base, pair, off, nbytes):
    a(f's_add_u32 s{base}, s{pair}, {hex(off)}', f's_addc_u32 s{base+1}, s{pair+1}, 0',
      f's_and_b32 s{base+1}, s{base+1}, 0xffff',
      f's_mov_b32 s{base+2}, {hex(nbytes)}', f's_mov_b32 s{base+3}, 0x00020000')

def round_bf16_pair(a, dst_lo, dst_hi, src_lo, src_hi, tmp):
    a(f'v_cvt_pk_bf16_f32 v{tmp}, v{src_lo}, v{src_hi}',
      f'v_lshlrev_b32 v{dst_lo}, 16, v{tmp}',
      f'v_and_b32 v{dst_hi}, 0xffff0000, v{tmp}')


import os
STAMPS = int(os.environ.get('STAMPS', '0'))
WS_DBG = 0x4000000
class Stamps:
    def __init__(self, a, kid):
        self.a, self.kid, self.n = a, kid, 0
    def begin(self):
        if not STAMPS: return
        a = self.a
        a(f's_load_dwordx2 s[96:97], s[0:1], {KA["ws"]}', 's_memrealtime s[92:93]', 's_memtime s[76:77]', 's_waitcnt lgkmcnt(0)')
        srd_off(a, 96, 96, WS_DBG + self.kid * 0x100000, 0x100000)
        for k in range(1, 7): a(f's_mov_b32 s{76+2*k}, 0')
        self.stamp(7)
    def stamp(self, k):
        if not STAMPS: return
        self.a(f's_memtime s[{76+2*k}:{77+2*k}]', 's_waitcnt lgkmcnt(0)')
    def end(self, role):
        if not STAMPS: return
        a = self.a
        a('s_mov_b64 exec, -1', 's_memrealtime s[94:95]', 's_memtime s[100:101]', 's_waitcnt lgkmcnt(0)', 'v_mov_b32 v14, s100')
        a('v_lshrrev_b32 v1, 6, v0', 'v_readfirstlane_b32 s100, v1', 's_lshl_b32 s101, s2, 3', 's_add_u32 s100, s100, s101', 's_lshl_b32 s100, s100, 6')
        for k in range(8): a(f'v_mov_b32 v{4+k}, s{76+2*k}')
        a('v_mov_b32 v12, s92', 'v_mov_b32 v13, s94', 'v_mov_b32 v15, s2', 'v_mov_b32 v2, 0', 's_mov_b64 exec, 1')
        for q in range(3): a(f'buffer_store_dwordx4 v[{4+4*q}:{7+4*q}], v2, s[96:99], s100 offen offset:{16*q}')
```
